```python
import torch

def _softmax(x, axis=-1):
    return torch.softmax(x, dim=axis)

def _gelu(x):
    return torch.nn.functional.gelu(x, approximate='tanh')

def _silu(x):
    return torch.nn.functional.silu(x)

def _sigmoid(x):
    return torch.sigmoid(x)

def _layernorm(x, axis=-1, eps=1e-05):
    m = x.mean(dim=axis, keepdim=True)
    v = x.var(dim=axis, keepdim=True, unbiased=False)
    return (x - m) / torch.sqrt(v + eps)

def _scatter_add(tgt, idx, src, axis=0):
    return tgt.clone().index_add_(axis, idx, src)

def _segment_sum(src, seg, n):
    out = torch.zeros((n,) + src.shape[1:], dtype=src.dtype)
    return out.index_add_(0, seg, src)

def _pad(x, pw):
    flat = tuple((v for pair in reversed(pw) for v in pair))
    return torch.nn.functional.pad(x, flat)
kernel_name = 'standalone__video_timesformer__vision'

def setup_inputs():

    _w = lambda a: (lambda t: t.to(torch.bfloat16) if t.is_floating_point() else t)(torch.as_tensor(a))
    T = 8
    p = 14
    HW = 512 // p * p
    N = (HW // p) ** 2
    C = 192
    return {'x': _w((lambda *s: torch.randn(*s, dtype=torch.bfloat16) * 0.1)(1, T, N, C)), 'wqkv_t': _w((lambda *s: torch.randn(*s, dtype=torch.bfloat16) * 0.1)(C, 3 * C)), 'wo_t': _w((lambda *s: torch.randn(*s, dtype=torch.bfloat16) * 0.1)(C, C)), 'wqkv_s': _w((lambda *s: torch.randn(*s, dtype=torch.bfloat16) * 0.1)(C, 3 * C)), 'wo_s': _w((lambda *s: torch.randn(*s, dtype=torch.bfloat16) * 0.8)(C, C))}

def reference(x, wqkv_t, wo_t, wqkv_s, wo_s):
    B, T, N, C = x.shape
    scale = C ** (-0.5)
    xt = (lambda x, *d: x.permute(*d))(x, 0, 2, 1, 3).reshape(B * N, T, C)
    h = _layernorm(xt, axis=-1)
    qkv = h @ wqkv_t
    q, k, v = (qkv[..., :C].clone(), qkv[..., C:2 * C].clone(), qkv[..., 2 * C:].clone())
    a = _softmax(torch.einsum('btc,bsc->bts', q, k) * scale, axis=-1)
    xt = xt + torch.einsum('bts,bsc->btc', a, v) @ wo_t
    x1 = (lambda x, *d: x.permute(*d))(xt.reshape(B, N, T, C), 0, 2, 1, 3)
    xs = x1.reshape(B * T, N, C)
    h = _layernorm(xs, axis=-1)
    qkv = h @ wqkv_s
    q, k, v = (qkv[..., :C].clone(), qkv[..., C:2 * C].clone(), qkv[..., 2 * C:].clone())
    a = _softmax(torch.einsum('bnc,bmc->bnm', q, k) * scale, axis=-1)
    xs = xs + torch.einsum('bnm,bmc->bnc', a, v) @ wo_s
    return xs.reshape(B, T, N, C)
```

```python
import re

def _expand(tok):
    tok = tok.strip()
    m = re.fullmatch(r"([vas])\[(\d+):(\d+)\]", tok)
    if m:
        return [m.group(1) + str(i) for i in range(int(m.group(2)), int(m.group(3)) + 1)]
    m = re.fullmatch(r"([vas])(\d+)", tok)
    if m:
        return [tok]
    if tok in ("vcc", "exec", "m0", "scc"):
        return [tok]
    if tok in ("vcc_lo", "vcc_hi"):
        return ["vcc"]
    if tok in ("exec_lo", "exec_hi"):
        return ["exec"]
    if tok.startswith("-") and len(tok) > 1 and tok[1] in "vas":
        return _expand(tok[1:])
    m = re.fullmatch(r"abs\((.*)\)", tok)
    if m:
        return _expand(m.group(1))
    m = re.fullmatch(r"\|(.*)\|", tok)
    if m:
        return _expand(m.group(1))
    return []

TRANS = ("v_exp_f32", "v_log_f32", "v_rcp_f32", "v_rsq_f32", "v_sqrt_f32", "v_sin_f32", "v_cos_f32")
NOSIZE = None

class Ins:
    __slots__ = ("text", "op", "kind", "rd", "wr", "passes", "srcC", "srcAB", "dstD", "wide", "note", "size")
    def __init__(self, text, rd=(), wr=(), note=None):
        self.text = text
        self.note = note
        body = text.split(";")[0].strip()
        parts = body.split(None, 1)
        op = parts[0]
        self.op = op
        rest = parts[1] if len(parts) > 1 else ""
        ops = [o.strip() for o in re.split(r",(?![^\[]*\])", rest)] if rest else []
        mods = ""
        if ops:
            sp = ops[-1].split(None, 1)
            ops[-1] = sp[0]
            mods = sp[1] if len(sp) > 1 else ""
        R, W = set(rd), set(wr)
        self.passes = 0; self.srcC = set(); self.srcAB = set(); self.dstD = set(); self.wide = False
        ex = lambda i: _expand(ops[i]) if i < len(ops) else []
        allsrc = lambda a: [r for i in range(a, len(ops)) for r in _expand(ops[i])]
        base = re.sub(r"_(e32|e64|sdwa|dpp)$", "", op)
        if op.startswith("v_mfma"):
            k = "mfma"
            self.passes = 8 if "32x32" in op else 4
            self.dstD = set(ex(0)); self.srcAB = set(ex(1) + ex(2)); self.srcC = set(ex(3))
            W |= self.dstD; R |= self.srcAB | self.srcC
        elif op.startswith("v_cmp"):
            k = "valu"; W |= set(ex(0)); R |= set(allsrc(1))
            if op.startswith("v_cmpx"): W.add("exec")
        elif base in ("v_readfirstlane_b32", "v_readlane_b32"):
            k = "valu"; W |= set(ex(0)); R |= set(allsrc(1))
        elif base in ("v_permlane16_swap_b32", "v_permlane32_swap_b32"):
            k = "valu"; W |= set(ex(0) + ex(1)); R |= set(ex(0) + ex(1))
        elif base in ("v_fmac_f32", "v_dot2c_f32_bf16", "v_writelane_b32"):
            k = "valu"; W |= set(ex(0)); R |= set(allsrc(0))
        elif base in ("v_add_co_u32", "v_sub_co_u32", "v_addc_co_u32", "v_subb_co_u32"):
            k = "valu"; W |= set(ex(0) + ex(1)); R |= set(allsrc(2))
        elif op.startswith("v_"):
            k = "trans" if base in TRANS else "valu"
            W |= set(ex(0)); R |= set(allsrc(1))
            if "_dpp" in op or "row_" in mods or "quad_perm" in mods: R |= set(ex(0));
        elif op.startswith("ds_read") or op.startswith("ds_bpermute") or op.startswith("ds_swizzle"):
            k = "dsr"; W |= set(ex(0)); R |= set(allsrc(1))
        elif op.startswith("ds_write") or op.startswith("ds_add") or op.startswith("ds_max") or op.startswith("ds_or"):
            k = "dsw"; R |= set(allsrc(0))
        elif op.startswith("buffer_load") or op.startswith("global_load"):
            if re.search(r"\blds\b", mods) or op.startswith("global_load_lds"):
                k = "dma"; R |= set(allsrc(0)); R.add("m0")
            else:
                k = "vml"; W |= set(ex(0)); R |= set(allsrc(1))
        elif op.startswith("buffer_store") or op.startswith("global_store"):
            k = "vms"; R |= set(allsrc(0))
            self.wide = ("x3" in op or "x4" in op)
        elif op.startswith("buffer_atomic") or op.startswith("global_atomic"):
            k = "vms"; R |= set(allsrc(0))
        elif op.startswith("s_load") or op.startswith("s_memtime") or op.startswith("s_memrealtime"):
            k = "smem"; W |= set(ex(0)); R |= set(allsrc(1))
        elif op in ("s_waitcnt", "s_nop", "s_barrier", "s_endpgm", "s_setprio", "s_sleep"):
            k = {"s_waitcnt": "wait", "s_nop": "nop", "s_barrier": "barrier", "s_endpgm": "end"}.get(op, "salu")
        elif op.startswith("s_cbranch") or op == "s_branch":
            k = "branch"
            if "vcc" in op: R.add("vcc")
            if "exec" in op: R.add("exec")
            if "scc" in op: R.add("scc")
        elif op.startswith("s_cmp"):
            k = "salu"; R |= set(allsrc(0)); W.add("scc")
        elif op.startswith("s_"):
            k = "salu"; W |= set(ex(0)); R |= set(allsrc(1))
            if "saveexec" in op: W.add("exec"); R.add("exec")
            if op.startswith("s_cselect") or op.startswith("s_addc") or op.startswith("s_subb"): R.add("scc")
            if not op.startswith(("s_mov", "s_cselect", "s_getpc", "s_mul_i32", "s_mul_hi")): W.add("scc")
        else:
            raise ValueError("cannot classify: " + text)
        self.kind = k
        self.rd = R; self.wr = W
        self.size = None
    def __repr__(self): return self.text

class Emitter:
    def __init__(self, name):
        self.name = name
        self.out = []
        self.vm = []
        self.lg = []
        self.pos = 0
        self.last = {}
        self.lastC = {}
        self.laststore = {}
        self.nops = 0
        self.waits = 0
        self.nins = 0
        self.log = None
    def raw(self, text): self.out.append(text)
    def comment(self, text): self.out.append("    ; " + text)
    def label(self, name):
        self.out.append(name + ":")
    def snapshot(self):
        import copy
        return copy.deepcopy((self.vm, self.lg, self.pos, self.last, self.lastC, self.laststore))
    def restore(self, s):
        import copy
        (self.vm, self.lg, self.pos, self.last, self.lastC, self.laststore) = copy.deepcopy(s)
    def merge(self, states):
        P = max(s[2] for s in states)
        q0 = (states[0][0], states[0][1])
        for s in states: assert (s[0], s[1]) == q0, "queues differ at join"
        last, lastC, lastst = {}, {}, {}
        for (vm, lg, pos, l, lc, ls) in states:
            d = P - pos
            for r, lst in l.items():
                last.setdefault(r, []).extend((p + d, k, ps, dD) for (p, k, ps, dD) in lst)
            for r, (p, ps) in lc.items():
                if r not in lastC or lastC[r][0] < p + d: lastC[r] = (p + d, ps)
            for r, p in ls.items():
                lastst[r] = max(lastst.get(r, -99), p + d)
        import copy
        self.vm, self.lg = copy.deepcopy(q0)
        self.pos, self.last, self.lastC, self.laststore = P, last, lastC, lastst
    def settle(self):
        self.last = {}; self.lastC = {}; self.laststore = {}
    def _emit_wait(self, vmn, lgn):
        parts = []
        if vmn is not None:
            assert vmn <= 63
            parts.append(f"vmcnt({vmn})")
            del self.vm[:max(0, len(self.vm) - vmn)]
        if lgn is not None:
            assert lgn <= 15, "lgkmcnt overflow"
            parts.append(f"lgkmcnt({lgn})")
            del self.lg[:max(0, len(self.lg) - lgn)]
        self.out.append("    s_waitcnt " + " ".join(parts))
        self.pos += 1; self.waits += 1; self.nins += 1
    def _need(self, rd, wr):
        vmn = None
        wr_reg = set(x for x in wr if not x.startswith("L:"))
        for i, (w, r) in enumerate(self.vm):
            if (w & rd) or (w & wr_reg) or (r & wr):
                n = len(self.vm) - 1 - i
                vmn = n if vmn is None else min(vmn, n)
        lgn = None
        anys = any(s for (_, _, s) in self.lg)
        for i, (w, r, s) in enumerate(self.lg):
            if (w & rd) or (w & wr_reg) or (r & wr):
                n = 0 if anys else len(self.lg) - 1 - i
                lgn = n if lgn is None else min(lgn, n)
        if lgn is not None and lgn > 15: lgn = 15
        return vmn, lgn
    def waitfor(self, rd=(), wr=()):
        rd = set(x for t in rd for x in (_expand(t) or [t])); wr = set(x for t in wr for x in (_expand(t) or [t]))
        vmn, lgn = self._need(rd, wr)
        if vmn is not None or lgn is not None:
            self._emit_wait(vmn, lgn)
            return True
        return False
    def wait(self, vm=None, lgkm=None):
        if vm is not None and len(self.vm) <= vm: vm = None if False else vm
        self._emit_wait(vm, lgkm)
    def wait_all(self):
        vmn = 0 if self.vm else None; lgn = 0 if self.lg else None
        if vmn is not None or lgn is not None: self._emit_wait(vmn, lgn)
    def _hazard(self, X):
        need = 0
        def req(p, n):
            nonlocal need
            need = max(need, p + n + 1)
        isv = X.kind in ("valu", "trans")
        for r in X.rd | X.wr:
            for (p, k, ps, dD) in self.last.get(r, ()):
                if k == "mfma":
                    big = {2: 5, 4: 8, 8: 12}[ps]
                    if X.kind == "mfma":
                        if r in X.srcAB: req(p, big)
                        if r in X.srcC or r in X.dstD:
                            if X.srcC == dD or (not X.srcC and X.dstD == dD) : pass
                            elif r in X.srcC: req(p, {2: 4, 4: 6, 8: 10}[ps])
                            elif r in X.dstD and X.dstD != dD: req(p, {2: 4, 4: 6, 8: 10}[ps])
                    else:
                        req(p, big)
                elif k in ("valu", "trans"):
                    if isinstance(dD, str) and dD.startswith("v_dot") and X.op != dD: req(p, 3)
                    if r in X.rd:
                        if X.kind == "mfma": req(p, 2)
                        if k == "trans" and isv: req(p, 1)
                        if X.op.startswith("v_permlane"): req(p, 2)
                        if X.op.startswith(("v_readfirstlane", "v_readlane")) and r[0] in "va": req(p, 1)
                        if "dpp" in X.text or "row_" in X.text: req(p, 2)
                        if r[0] == "s" or r == "vcc":
                            if isv: req(p, 2)
                            if X.kind in ("vml", "vms", "dma"): req(p, 5)
                            if X.kind in ("salu", "branch"): req(p, 3)
                        if r == "exec": req(p, 5)
                elif k == "salu":
                    if r == "m0" and X.kind == "dma": req(p, 1)
                    if r == "exec" and X.kind == "mfma": req(p, 4)
        if isv or X.kind in ("dsr", "vml"):
            for r in X.wr:
                if r in self.lastC:
                    p, ps = self.lastC[r]
                    req(p, {2: 1, 4: 3, 8: 7}[ps])
                if r in self.laststore:
                    req(self.laststore[r], 2)
        return need
    def e(self, text, rd=(), wr=(), note=None):
        X = Ins(text, rd, wr, note)
        if X.kind not in ("wait",):
            vmn, lgn = self._need(X.rd, X.wr)
            if vmn is not None or lgn is not None: self._emit_wait(vmn, lgn)
        need = self._hazard(X)
        gap = need - (self.pos + 1)
        while gap > 0:
            n = min(gap, 16)
            self.out.append(f"    s_nop {n-1}")
            self.pos += n; gap -= n; self.nops += 1; self.nins += 1
            if self.log is not None: self.log.append(("nop", n, text))
        self.pos += 1
        self.nins += 1
        self.out.append("    " + text)
        if X.kind == "nop":
            self.pos += int(text.split()[1])
        if X.kind == "wait":
            m = re.search(r"vmcnt\((\d+)\)", text)
            if m: del self.vm[:max(0, len(self.vm) - int(m.group(1)))]
            m = re.search(r"lgkmcnt\((\d+)\)", text)
            if m: del self.lg[:max(0, len(self.lg) - int(m.group(1)))]
        if X.kind in ("vml", "dma", "vms"):
            self.vm.append((set(X.wr), set(r for r in X.rd if r.startswith("L:"))))
            assert len(self.vm) <= 63, "too many outstanding vm ops"
        if X.kind in ("dsr", "dsw", "smem"):
            self.lg.append((set(X.wr), set(r for r in X.rd if r.startswith("L:")), X.kind == "smem"))
        for r in X.wr:
            if X.kind in ("mfma", "valu", "trans", "salu"):
                self.last[r] = [(self.pos, X.kind, X.passes, X.op if X.op.startswith("v_dot") else X.dstD)] + ([t for t in self.last.get(r, ()) if t[1] == "mfma" and X.kind == "mfma" and self.pos - t[0] < 20] if False else [])
            else:
                self.last.pop(r, None)
        if X.kind == "mfma":
            for r in X.srcC: self.lastC[r] = (self.pos, X.passes)
        if X.kind == "vms" and X.wide:
            for r in X.rd: self.laststore[r] = self.pos
        return X
    def text(self): return "\n".join(self.out) + "\n"

def vr(a, n=1): return f"v{a}" if n == 1 else f"v[{a}:{a+n-1}]"
def ar(a, n=1): return f"a{a}" if n == 1 else f"a[{a}:{a+n-1}]"
def sr(a, n=1): return f"s{a}" if n == 1 else f"s[{a}:{a+n-1}]"
```

```python
from asmgen import *
from layout import *

MF = "v_mfma_f32_16x16x32_bf16"
MF16 = "v_mfma_f32_16x16x16_bf16"
NSLOT = 9
WRING = NSLOT * 3072
HB = 4 * WRING
XB = HB + 18432
SB = XB + 18432
STX = SB + 12288
LDS1 = STX + 1536
sX, sWQ, sWO, sWS = 4, 8, 12, 16
sW, sWB, sN0, sT = 20, 21, 22, 23
sTMP = 24
sMASK = 40
sDBG = 48
vL, vI, vG = 250, 251, 252
vWq = [240, 241, 242]; vWo = [243, 244, 245]
vTR, vTOA, vTOB = 246, 247, 248
vH = 249
aH = lambda T, ks: (T * 6 + ks) * 4
aWF = lambda buf, nt: 72 + buf * 12 + nt * 4

def gen_k1(stamps=False, X=None):
    X = X or {}
    E = Emitter("k1"); e = E.e
    nstamp = [0]; gen_k1.stamp_names = []
    def stamp(name):
        if not stamps: return
        k = nstamp[0]; nstamp[0] += 1
        e(f"s_memtime s[{50+2*k}:{51+2*k}]"); gen_k1.stamp_names.append(name)
    E.raw(".globl k1_kernel\n.p2align 8\n.type k1_kernel,@function\nk1_kernel:")
    e("s_cmp_ge_u32 s2, 252"); e("s_cbranch_scc1 K1_EXIT")
    stamp("entry")
    e("s_cmp_ge_u32 s2, 216"); e("s_cbranch_scc1 K1_SIDE")
    main_snap = None
    e(f"s_load_dwordx2 s[{sX}:{sX+1}], s[0:1], 0")
    e(f"s_load_dwordx2 s[{sWQ}:{sWQ+1}], s[0:1], 8")
    e(f"s_load_dwordx2 s[{sWO}:{sWO+1}], s[0:1], 16")
    e(f"s_load_dwordx2 s[{sWS}:{sWS+1}], s[0:1], 56")
    if stamps: e(f"s_load_dwordx2 s[{sDBG}:{sDBG+1}], s[0:1], 56")
    t0, t1, t2, t3 = 230, 231, 232, 233
    e(f"v_lshrrev_b32 v{t0}, 6, v0")
    e(f"v_and_b32 v{vL}, 63, v0")
    e(f"v_readfirstlane_b32 s{sW}, v{t0}")
    e(f"v_and_b32 v{vI}, 15, v{vL}")
    e(f"v_lshrrev_b32 v{vG}, 4, v{vL}")
    e(f"v_lshlrev_b32 v{vH}, 4, v{vL}")
    e(f"s_mul_i32 s{sN0}, s2, 6")
    e(f"s_min_u32 s{sT}, s{sW}, 2")
    e(f"s_mul_i32 s{sWB}, s{sW}, {WRING}")
    vX = 234
    e(f"v_and_b32 v{t0}, 7, v{vI}")
    e(f"s_mov_b32 s24, {XFS}")
    e(f"v_mul_lo_u32 v{t0}, v{t0}, s24")
    e(f"v_lshrrev_b32 v{t1}, 3, v{vI}")
    e(f"v_mul_u32_u24 v{t1}, 384, v{t1}")
    e(f"v_lshl_add_u32 v{t1}, v{vG}, 4, v{t1}")
    e(f"v_add_u32 v{vX}, v{t0}, v{t1}")
    e(f"s_lshl_b32 s25, s{sT}, 1"); e(f"s_add_u32 s25, s25, s{sN0}"); e(f"s_mul_i32 s25, s25, 384")
    e(f"s_mov_b32 s26, 0x2aaaaaab")
    e(f"s_mul_i32 s27, s{sW}, 96")
    for k in range(3):
        e(f"v_add_u32 v{t0}, {64*k}, v{vL}")
        e(f"v_mul_hi_u32 v{t1}, v{t0}, s26")
        e(f"v_mul_u32_u24 v{t2}, 6, v{t1}")
        e(f"v_sub_u32 v{t2}, v{t0}, v{t2}")
        e(f"v_lshlrev_b32 v{t2}, 4, v{t2}")
        e(f"v_add_u32 v{t2}, s27, v{t2}")
        e(f"v_subrev_u32 v{t2}, {1024*k}, v{t2}") if k else None
        e(f"v_mul_u32_u24 v{t3}, 384, v{t1}")
        e(f"v_add_u32 v{vWo[k]}, v{t3}, v{t2}")
        e(f"v_and_b32 v{t0}, 0x13, v{t1}")
        e(f"v_and_b32 v{t3}, 4, v{t1}")
        e(f"v_lshl_or_b32 v{t0}, v{t3}, 1, v{t0}")
        e(f"v_and_b32 v{t3}, 8, v{t1}")
        e(f"v_lshrrev_b32 v{t3}, 1, v{t3}")
        e(f"v_or_b32 v{t0}, v{t0}, v{t3}")
        e(f"v_mul_u32_u24 v{t0}, 1152, v{t0}")
        e(f"v_add_u32 v{vWq[k]}, v{t0}, v{t2}")
    E.waitfor(rd=[f"s[{sX}:{sX+1}]"])
    for (b, n) in ((sX, T * XFS), (sWQ, 221184), (sWO, 73728), (sWS, WS_END)):
        e(f"s_and_b32 s{b+1}, s{b+1}, 0xffff"); e(f"s_mov_b32 s{b+2}, {n}"); e(f"s_mov_b32 s{b+3}, 0x20000")
    srdX, srdWQ, srdWO, srdWS = (f"s[{b}:{b+3}]" for b in (sX, sWQ, sWO, sWS))
    stamp("ready")
    for ks in range(6):
        e(f"buffer_load_dwordx4 {vr(4*ks,4)}, v{vX}, {srdX}, s25 offen offset:{ks*64}")
    def slab_dma(s):
        M, ks = s // 6, s % 6; slot = s % NSLOT
        e(f"s_add_u32 m0, s{sWB}, {slot*3072}")
        if M < 3: e(f"s_mov_b32 s28, {ks*32*1152 + M*384}")
        else: e(f"s_mov_b32 s28, {ks*32*384}")
        for k in range(3):
            if M < 3: e(f"buffer_load_dwordx4 v{vWq[k]}, {srdWQ}, s28 offen offset:{k*1024} lds", wr=[f"L:r{slot}"])
            else: e(f"buffer_load_dwordx4 v{vWo[k]}, {srdWO}, s28 offen offset:{k*1024} lds", wr=[f"L:r{slot}"])
    npre = X.get('npre', 4)
    for s in range(npre): slab_dma(s)
    stamp("iss1")
    e(f"v_lshrrev_b32 v{t0}, 1, v{vG}"); e(f"v_lshlrev_b32 v{t0}, 4, v{t0}")
    e(f"v_and_b32 v{t1}, 1, v{vG}"); e(f"v_lshl_add_u32 v{t0}, v{t1}, 2, v{t0}")
    e(f"v_lshrrev_b32 v{t1}, 2, v{vI}"); e(f"v_add_u32 v{t0}, v{t0}, v{t1}")
    e(f"v_mul_u32_u24 v{t0}, 96, v{t0}")
    e(f"v_and_b32 v{t2}, 3, v{vI}")
    e(f"v_lshl_add_u32 v{t0}, v{t2}, 3, v{t0}")
    e(f"v_add_u32 v{vTR}, s{sWB}, v{t0}")
    e(f"v_lshl_add_u32 v{t0}, v{vG}, 2, v{t1}")
    e(f"v_mul_u32_u24 v{t0}, 96, v{t0}")
    e(f"v_add_u32 v{t0}, s{sWB}, v{t0}")
    e(f"v_lshl_add_u32 v{vTOA}, v{t2}, 4, v{t0}")
    e(f"v_lshl_add_u32 v{vTOB}, v{t2}, 3, v{t0}")
    e(f"v_add_u32 v{vTOB}, 64, v{vTOB}")
    e(f"v_lshrrev_b32 v{t0}, 1, v{vG}"); e(f"v_lshrrev_b32 v{t1}, 3, v{vI}")
    e(f"v_cmp_eq_u32 s[{sMASK}:{sMASK+1}], v{t0}, v{t1}")
    F = lambda k: 24 + k
    ln = []
    L_ = lambda txt: ln.append(txt)
    for r in range(24):
        L_(f"v_lshlrev_b32 v{F(2*r)}, 16, v{r}")
        L_(f"v_and_b32 v{F(2*r+1)}, 0xffff0000, v{r}")
    sm, sm2, tt = 72, 74, 76
    L_(f"v_pk_add_f32 {vr(sm,2)}, {vr(F(0),2)}, {vr(F(2),2)}")
    L_(f"v_pk_add_f32 {vr(sm2,2)}, {vr(F(4),2)}, {vr(F(6),2)}")
    for k in range(8, 48, 4):
        L_(f"v_pk_add_f32 {vr(sm,2)}, {vr(sm,2)}, {vr(F(k),2)}")
        L_(f"v_pk_add_f32 {vr(sm2,2)}, {vr(sm2,2)}, {vr(F(k+2),2)}")
    L_(f"v_pk_add_f32 {vr(sm,2)}, {vr(sm,2)}, {vr(sm2,2)}")
    L_(f"v_add_f32 v{sm}, v{sm}, v{sm+1}")
    def xreduce(reg, tmp, op="v_add_f32", out=None):
        o = out or e
        o(f"v_mov_b32 v{tmp}, v{reg}"); o(f"v_permlane16_swap_b32 v{reg}, v{tmp}"); o(f"{op} v{reg}, v{reg}, v{tmp}")
        o(f"v_mov_b32 v{tmp}, v{reg}"); o(f"v_permlane32_swap_b32 v{reg}, v{tmp}"); o(f"{op} v{reg}, v{reg}, v{tmp}")
    xreduce(sm, tt, out=L_)
    L_(f"v_mul_f32 v{sm}, 0xbbaaaaab, v{sm}")
    for k in range(0, 48, 2):
        L_(f"v_pk_add_f32 {vr(F(k),2)}, {vr(F(k),2)}, {vr(sm,2)} op_sel_hi:[1,0]")
    L_(f"v_pk_mul_f32 {vr(sm2,2)}, {vr(F(0),2)}, {vr(F(0),2)}")
    L_(f"v_pk_mul_f32 {vr(tt,2)}, {vr(F(2),2)}, {vr(F(2),2)}")
    for k in range(4, 48, 4):
        L_(f"v_pk_fma_f32 {vr(sm2,2)}, {vr(F(k),2)}, {vr(F(k),2)}, {vr(sm2,2)}")
        L_(f"v_pk_fma_f32 {vr(tt,2)}, {vr(F(k+2),2)}, {vr(F(k+2),2)}, {vr(tt,2)}")
    L_(f"v_pk_add_f32 {vr(sm2,2)}, {vr(sm2,2)}, {vr(tt,2)}")
    L_(f"v_add_f32 v{sm2}, v{sm2}, v{sm2+1}")
    xreduce(sm2, tt, out=L_)
    L_(f"v_mov_b32 v{tt}, 0x3727c5ac")
    L_(f"v_fmac_f32 v{tt}, 0x3baaaaab, v{sm2}")
    L_(f"v_rsq_f32 v{tt}, v{tt}")
    for k in range(0, 48, 2):
        L_(f"v_pk_mul_f32 {vr(F(k),2)}, {vr(F(k),2)}, {vr(tt,2)} op_sel_hi:[1,0]")
    rest = list(range(npre, NSLOT))
    step = len(ln) // (len(rest) + 1) if rest else 10**9
    E.waitfor(rd=["v[0:23]"])
    stamp("xin")
    for k, txt in enumerate(ln):
        e(txt)
        if rest and (k + 1) % step == 0: slab_dma(rest.pop(0))
    while rest: slab_dma(rest.pop(0))
    HP = 80
    for r in range(24):
        e(f"v_cvt_pk_bf16_f32 v{HP+r}, v{F(2*r)}, v{F(2*r+1)}")
    e(f"s_mul_i32 s24, s{sT}, 6144")
    e(f"s_add_u32 s25, s24, {HB}"); e(f"s_add_u32 s24, s24, {XB}")
    e(f"v_add_u32 v{t0}, s25, v{vH}"); e(f"v_add_u32 v{t1}, s24, v{vH}")
    for ks in range(6):
        e(f"ds_write_b128 v{t0}, {vr(HP+4*ks,4)} offset:{ks*1024}")
        e(f"ds_write_b128 v{t1}, {vr(4*ks,4)} offset:{ks*1024}")
    E.wait(lgkm=0)
    e("s_barrier")
    stamp("ln1")
    vHB = 235
    e(f"v_add_u32 v{vHB}, {HB}, v{vH}")
    for ks in range(6):
        for Tt in range(3):
            e(f"ds_read_b128 {ar(aH(Tt,ks),4)}, v{vHB} offset:{(Tt*6+ks)*1024}")
    def slab_reads(s, buf):
        M = s // 6; slot = s % NSLOT; out = []
        for nt in range(3):
            for hh in range(2):
                if M < 3: adr, off = vTR, slot*3072 + hh*768 + nt*32
                elif nt < 2: adr, off = vTOA, slot*3072 + hh*1536 + nt*8
                else: adr, off = vTOB, slot*3072 + hh*1536
                out.append(lambda adr=adr, off=off, nt=nt, hh=hh: e(f"ds_read_b64_tr_b16 {ar(aWF(buf,nt)+2*hh,2)}, v{adr} offset:{off}", rd=[f"L:r{slot}"]))
        return out
    QA = lambda nt, Tt: (nt * 3 + Tt) * 4
    KA = lambda nt, Tt: 36 + (nt * 3 + Tt) * 4
    VA = lambda Tt, nt: 72 + (Tt * 3 + nt) * 4
    YA = lambda nt, Tt: 108 + (Tt * 3 + nt) * 4
    def gemm(M, fillers=None, bfrag=None):
        fillers = fillers or []
        fi = 0
        for ks in range(6):
            s = M * 6 + ks; buf = s & 1
            nxt = slab_reads(s + 1, (s + 1) & 1) if s + 1 < 24 and not (M == 2 and ks == 5 and False) else []
            k = 0
            for nt in range(3):
                for Tt in range(3):
                    W = ar(aWF(buf, nt), 4)
                    if M == 0: d, a, b = vr(QA(nt, Tt), 4), W, ar(aH(Tt, ks), 4)
                    elif M == 1: d, a, b = vr(KA(nt, Tt), 4), W, ar(aH(Tt, ks), 4)
                    elif M == 2: d, a, b = vr(VA(Tt, nt), 4), ar(aH(Tt, ks), 4), W
                    else: d, a, b = vr(YA(nt, Tt), 4), W, ar(aH(Tt, ks), 4)
                    e(f"{MF} {d}, {a}, {b}, {'0' if ks == 0 else d}")
                    if k == 0 and s + NSLOT - 1 < 24 and s >= 1:
                        slab_dma(s + NSLOT - 1)
                    if 1 <= k <= 6 and nxt: nxt[k - 1]()
                    n = 0
                    while fi < len(fillers) and n < (1 if 1 <= k <= 6 and nxt else 2):
                        fillers[fi](); fi += 1; n += 1
                    k += 1
        while fi < len(fillers): fillers[fi](); fi += 1
    for f in slab_reads(0, 0): f()
    gemm(0); stamp("q")
    gemm(1); stamp("k")
    for Tt in range(3):
        for nt in range(3):
            for a in (QA(nt, Tt), KA(nt, Tt)):
                e(f"v_cvt_pk_bf16_f32 v{a}, v{a}, v{a+1}"); e(f"v_cvt_pk_bf16_f32 v{a+1}, v{a+2}, v{a+3}")
    SP = lambda Tt: 144 + 4 * Tt
    for nt in range(3):
        for Tt in range(3):
            e(f"{MF16} {vr(SP(Tt),4)}, {vr(KA(nt,Tt),2)}, {vr(QA(nt,Tt),2)}, {'0' if nt == 0 else vr(SP(Tt),4)}")
    vSW, vSR = 236, 237
    e(f"s_mul_i32 s24, s{sW}, 3072"); e(f"s_add_u32 s24, s24, {SB}")
    e(f"v_add_u32 v{vSW}, s24, v{vH}"); e(f"v_add_u32 v{vSR}, {SB}, v{vH}")
    for Tt in range(3): e(f"ds_write_b128 v{vSW}, {vr(SP(Tt),4)} offset:{Tt*1024}")
    E.waitfor(rd=[], wr=[])
    E.wait(lgkm=0)
    e("s_barrier")
    stamp("spart")
    SR = lambda Tt, src: 156 + (Tt * 4 + src) * 4
    for Tt in range(3):
        for src in range(4): e(f"ds_read_b128 {vr(SR(Tt,src),4)}, v{vSR} offset:{src*3072 + Tt*1024}")
    fill = []
    CS = 0x3dd53b95
    import struct
    cs = struct.unpack("<I", struct.pack("<f", SCALE_LOG2E))[0]
    PP = lambda Tt: 204 + 2 * Tt
    A_ = lambda txt: fill.append(lambda: e(txt))
    for Tt in range(3):
        s0 = SR(Tt, 0); m = 210 + 0; tm = 211
        for r in range(4):
            A_(f"v_add_f32 v{s0+r}, v{s0+r}, v{SR(Tt,1)+r}")
            A_(f"v_add_f32 v{SR(Tt,2)+r}, v{SR(Tt,2)+r}, v{SR(Tt,3)+r}")
        for r in range(4): A_(f"v_add_f32 v{s0+r}, v{s0+r}, v{SR(Tt,2)+r}")
        A_(f"v_max3_f32 v{m}, v{s0}, v{s0+1}, v{s0+2}"); A_(f"v_max_f32 v{m}, v{m}, v{s0+3}")
        A_(f"v_mov_b32 v{tm}, v{m}"); A_(f"v_permlane16_swap_b32 v{m}, v{tm}"); A_(f"v_max_f32 v{m}, v{m}, v{tm}")
        A_(f"v_mul_f32 v{m}, {hex(cs)}, v{m}")
        for r in range(4): A_(f"v_fma_f32 v{s0+r}, v{s0+r}, s29, -v{m}")
        for r in range(4): A_(f"v_exp_f32 v{s0+r}, v{s0+r}")
        A_(f"v_add_f32 v{m}, v{s0}, v{s0+1}"); A_(f"v_add_f32 v{tm}, v{s0+2}, v{s0+3}"); A_(f"v_add_f32 v{m}, v{m}, v{tm}")
        A_(f"v_mov_b32 v{tm}, v{m}"); A_(f"v_permlane16_swap_b32 v{m}, v{tm}"); A_(f"v_add_f32 v{m}, v{m}, v{tm}")
        A_(f"v_rcp_f32 v{m}, v{m}")
        for r in range(4): A_(f"v_mul_f32 v{s0+r}, v{s0+r}, v{m}")
        A_(f"v_cvt_pk_bf16_f32 v{PP(Tt)}, v{s0}, v{s0+1}"); A_(f"v_cvt_pk_bf16_f32 v{PP(Tt)+1}, v{s0+2}, v{s0+3}")
        A_(f"v_cndmask_b32 v{PP(Tt)}, 0, v{PP(Tt)}, s[{sMASK}:{sMASK+1}]"); A_(f"v_cndmask_b32 v{PP(Tt)+1}, 0, v{PP(Tt)+1}, s[{sMASK}:{sMASK+1}]")
    e(f"s_mov_b32 s29, {hex(cs)}")
    gemm(2, fill); stamp("v")
    for Tt in range(3):
        for nt in range(3):
            a = VA(Tt, nt)
            e(f"v_cvt_pk_bf16_f32 v{a}, v{a}, v{a+1}"); e(f"v_cvt_pk_bf16_f32 v{a+1}, v{a+2}, v{a+3}")
    OA = lambda Tt, nt: (Tt * 3 + nt) * 4
    for Tt in range(3):
        for nt in range(3):
            e(f"{MF16} {vr(OA(Tt,nt),4)}, {vr(VA(Tt,nt),2)}, {vr(PP(Tt),2)}, 0")
    vOW = [236, 237, 238]
    for nt in range(3):
        e(f"s_mul_i32 s24, s{sW}, 3"); e(f"s_add_u32 s24, s24, {nt}")
        e(f"s_lshr_b32 s25, s24, 1"); e(f"s_lshl_b32 s25, s25, 10"); e(f"s_and_b32 s24, s24, 1"); e(f"s_lshl_b32 s24, s24, 3")
        e(f"s_add_u32 s24, s24, s25"); e(f"s_add_u32 s24, s24, {HB}")
        e(f"v_add_u32 v{vOW[nt]}, s24, v{vH}")
    for Tt in range(3):
        for nt in range(3):
            a = OA(Tt, nt)
            e(f"v_cvt_pk_bf16_f32 v{a}, v{a}, v{a+1}"); e(f"v_cvt_pk_bf16_f32 v{a+1}, v{a+2}, v{a+3}")
            e(f"ds_write_b64 v{vOW[nt]}, {vr(a,2)} offset:{Tt*6144}")
    E.wait(lgkm=0)
    e("s_barrier")
    stamp("o")
    for ks in range(6):
        for Tt in range(3):
            e(f"ds_read_b128 {ar(aH(Tt,ks),4)}, v{vHB} offset:{(Tt*6+ks)*1024}")
    XR = lambda Tt: 36 + 6 * Tt
    e(f"s_mul_i32 s24, s{sW}, 6")
    e(f"v_add_u32 v{t0}, s24, v{vG}")
    def xaddr(dst, c16):
        e(f"v_lshrrev_b32 v{t2}, 2, v{c16}"); e(f"v_lshlrev_b32 v{t2}, 10, v{t2}")
        e(f"v_and_b32 v{t3}, 3, v{c16}"); e(f"v_lshl_add_u32 v{t3}, v{t3}, 4, v{vI}")
        e(f"v_lshl_add_u32 v{dst}, v{t3}, 4, v{t2}"); e(f"v_add_u32 v{dst}, {XB}, v{dst}")
    vXR4, vXR2 = 236, 237
    xaddr(vXR4, t0)
    e(f"v_lshrrev_b32 v{t1}, 1, v{vG}"); e(f"s_add_u32 s24, s24, 4"); e(f"v_add_u32 v{t1}, s24, v{t1}")
    xaddr(vXR2, t1)
    e(f"v_and_b32 v{t2}, 1, v{vG}"); e(f"v_lshl_add_u32 v{vXR2}, v{t2}, 3, v{vXR2}")
    for Tt in range(3):
        e(f"ds_read_b128 {vr(XR(Tt),4)}, v{vXR4} offset:{Tt*6144}")
        e(f"ds_read_b64 {vr(XR(Tt)+4,2)}, v{vXR2} offset:{Tt*6144}")
    fill = []
    A_ = lambda txt: fill.append(lambda: e(txt))
    vA4 = lambda Tt: 60 + Tt; vA2 = lambda Tt: 63 + Tt; vAS = lambda Tt: 66 + Tt
    u0, u1, u2, u3, u4 = 70, 71, 72, 73, 74
    e(f"s_mov_b32 s26, {FS}"); e(f"s_mov_b32 s27, {CH}"); e(f"s_mov_b32 s30, {N*8}")
    A_(f"v_and_b32 v{u0}, 7, v{vI}"); A_(f"v_mul_lo_u32 v{u4}, v{u0}, s30"); A_(f"v_mul_lo_u32 v{u0}, v{u0}, s26")
    for Tt in range(3):
        A_(f"v_lshrrev_b32 v{u1}, 3, v{vI}"); A_(f"v_add_u32 v{u1}, s{31+Tt}, v{u1}")
        A_(f"v_lshl_add_u32 v{vAS(Tt)}, v{u1}, 3, v{u4}")
        A_(f"v_lshrrev_b32 v{u2}, 5, v{u1}"); A_(f"v_mul_lo_u32 v{u2}, v{u2}, s27"); A_(f"v_add_u32 v{u2}, v{u2}, v{u0}")
        A_(f"v_and_b32 v{u3}, 31, v{u1}"); A_(f"v_lshl_add_u32 v{u2}, v{u3}, 7, v{u2}")
        A_(f"v_and_b32 v{u1}, 6, v{u1}")
        for (dst, c) in ((vA4(Tt), t0), (vA2(Tt), t1)):
            A_(f"v_and_b32 v{u3}, 7, v{c}"); A_(f"v_xor_b32 v{u3}, v{u3}, v{u1}"); A_(f"v_lshl_add_u32 v{dst}, v{u3}, 4, v{u2}")
            A_(f"v_lshrrev_b32 v{u3}, 3, v{c}"); A_(f"v_lshl_add_u32 v{dst}, v{u3}, 12, v{dst}")
        A_(f"v_and_b32 v{u3}, 1, v{vG}"); A_(f"v_lshl_add_u32 v{vA2(Tt)}, v{u3}, 3, v{vA2(Tt)}")
    for Tt in range(3): e(f"s_add_u32 s{31+Tt}, s{sN0}, {2*Tt}")
    gemm(3, fill); stamp("y")
    vSTW, vSTR = 236, 237
    e(f"v_lshlrev_b32 v{vSTR}, 3, v{vI}")
    e(f"s_mul_i32 s24, s{sW}, 384"); e(f"s_add_u32 s24, s24, {STX}")
    e(f"v_add_u32 v{vSTW}, s24, v{vSTR}"); e(f"v_add_u32 v{vSTR}, {STX}, v{vSTR}")
    for Tt in range(3):
        y = YA(0, Tt); xr = XR(Tt)
        for j in range(12):
            tmp = 76 + (j & 1)
            if j & 1: e(f"v_and_b32 v{tmp}, 0xffff0000, v{xr + (j>>1)}")
            else: e(f"v_lshlrev_b32 v{tmp}, 16, v{xr + (j>>1)}")
            e(f"v_add_f32 v{y+j}, v{y+j}, v{tmp}")
        a, b = 78 + 0, 80
        e(f"v_pk_add_f32 {vr(a,2)}, {vr(y,2)}, {vr(y+2,2)}")
        e(f"v_pk_mul_f32 {vr(b,2)}, {vr(y,2)}, {vr(y,2)}")
        e(f"v_pk_fma_f32 {vr(b,2)}, {vr(y+2,2)}, {vr(y+2,2)}, {vr(b,2)}")
        for j in range(4, 12, 2):
            e(f"v_pk_add_f32 {vr(a,2)}, {vr(a,2)}, {vr(y+j,2)}")
            e(f"v_pk_fma_f32 {vr(b,2)}, {vr(y+j,2)}, {vr(y+j,2)}, {vr(b,2)}")
        o = 82 + 2 * Tt
        e(f"v_add_f32 v{o}, v{a}, v{a+1}"); e(f"v_add_f32 v{o+1}, v{b}, v{b+1}")
        xreduce(o, 76); xreduce(o + 1, 77)
        e(f"ds_write_b64 v{vSTW}, {vr(o,2)} offset:{Tt*128}")
    E.wait(lgkm=0)
    e("s_barrier")
    stamp("stat")
    ST = lambda Tt, w: 0 + (Tt * 4 + w) * 2
    for Tt in range(3):
        for w in range(4): e(f"ds_read_b64 {vr(ST(Tt,w),2)}, v{vSTR} offset:{w*384 + Tt*128}")
    e(f"v_cmp_eq_u32 vcc, 0, v{vG}")
    e(f"s_mov_b64 s[34:35], vcc")
    for Tt in range(3):
        a = ST(Tt, 0); y = YA(0, Tt)
        e(f"v_pk_add_f32 {vr(a,2)}, {vr(a,2)}, {vr(a+2,2)}"); e(f"v_pk_add_f32 {vr(a+4,2)}, {vr(a+4,2)}, {vr(a+6,2)}")
        e(f"v_pk_add_f32 {vr(a,2)}, {vr(a,2)}, {vr(a+4,2)}")
        e(f"v_mul_f32 v{a}, 0x3baaaaab, v{a}")
        e(f"v_mul_f32 v{a+2}, v{a}, v{a}")
        e(f"v_fma_f32 v{a+2}, v{a+1}, s36, -v{a+2}") if False else None
        e(f"v_mul_f32 v{a+3}, 0x3baaaaab, v{a+1}"); e(f"v_sub_f32 v{a+2}, v{a+3}, v{a+2}")
        e(f"v_max_f32 v{a+2}, 0, v{a+2}"); e(f"v_add_f32 v{a+2}, 0x3727c5ac, v{a+2}")
        e(f"v_rsq_f32 v{a+3}, v{a+2}")
        e(f"v_mul_f32 v{a+1}, v{a+2}, v{a+3}")
        e(f"v_mul_f32 v{a+4}, v{a}, v{a+3}")
        for j in range(12): e(f"v_fma_f32 v{y+j}, v{y+j}, v{a+3}, -v{a+4}")
        for p in range(6): e(f"v_cvt_pk_bf16_f32 v{y+p}, v{y+2*p}, v{y+2*p+1}")
        e(f"buffer_store_dwordx4 {vr(y,4)}, v{vA4(Tt)}, {srdWS}, 0 offen")
        e(f"buffer_store_dwordx2 {vr(y+4,2)}, v{vA2(Tt)}, {srdWS}, 0 offen")
    e(f"s_mov_b32 s24, {WS_STAT}")
    for Tt in range(3):
        e(f"s_cmp_eq_u32 s{sW}, {Tt}"); e(f"s_cbranch_scc0 K1_ST{Tt}")
        e(f"s_mov_b64 exec, s[34:35]")
        e(f"buffer_store_dwordx2 {vr(ST(Tt,0),2)}, v{vAS(Tt)}, {srdWS}, s24 offen")
        e(f"s_mov_b64 exec, -1")
        E.label(f"K1_ST{Tt}")
    def dump_stamps():
        stamp("end")
        E.wait(lgkm=0)
        e(f"s_lshl_b32 s36, s2, 2"); e(f"s_add_u32 s36, s36, s{sW}"); e(f"s_lshl_b32 s36, s36, 7")
        e(f"s_add_u32 s36, s36, {WS_END + 0x40000}")
        e(f"s_add_u32 s{sDBG}, s{sDBG}, s36"); e(f"s_addc_u32 s{sDBG+1}, s{sDBG+1}, 0")
        e(f"v_mov_b32 v1, 0")
        for k in range(1, nstamp[0]):
            e(f"s_sub_u32 s36, s{50+2*k}, s50"); e(f"v_mov_b32 v0, s36")
            e(f"global_store_dword v1, v0, s[{sDBG}:{sDBG+1}] offset:{4*k}")
    if stamps: dump_stamps()
    e("s_endpgm")
    E.label("K1_SIDE"); E.vm = []; E.lg = []; E.settle()
    sQS, sOS = 8, 12
    e(f"s_load_dwordx2 s[{sQS}:{sQS+1}], s[0:1], 24")
    e(f"s_load_dwordx2 s[{sOS}:{sOS+1}], s[0:1], 32")
    e(f"s_load_dwordx2 s[{sWS}:{sWS+1}], s[0:1], 56")
    e(f"v_lshrrev_b32 v{t0}, 6, v0"); e(f"v_and_b32 v{vL}, 63, v0")
    e(f"v_readfirstlane_b32 s{sW}, v{t0}")
    e(f"v_and_b32 v{vI}, 15, v{vL}"); e(f"v_lshrrev_b32 v{vG}, 4, v{vL}")
    e(f"s_sub_u32 s24, s2, 216"); e(f"s_lshl_b32 s24, s24, 2"); e(f"s_add_u32 s24, s24, s{sW}")
    e(f"s_cmp_ge_u32 s24, 72"); e(f"s_cselect_b32 s25, 1, 0"); e(f"s_cselect_b32 s26, 72, 0"); e(f"s_sub_u32 s24, s24, s26")
    e(f"s_mul_i32 s26, s24, 3641"); e(f"s_lshr_b32 s26, s26, 16")
    e(f"s_mul_i32 s27, s26, 18"); e(f"s_sub_u32 s27, s24, s27")
    e(f"s_mul_i32 s28, s27, 21846"); e(f"s_lshr_b32 s28, s28, 16")
    e(f"s_mul_i32 s29, s28, 3"); e(f"s_sub_u32 s29, s27, s29")
    E.waitfor(rd=[f"s[{sQS}:{sQS+1}]"])
    for (b, n) in ((sQS, 221184), (sOS, 73728), (sWS, WS_END)):
        e(f"s_and_b32 s{b+1}, s{b+1}, 0xffff"); e(f"s_mov_b32 s{b+2}, {n}"); e(f"s_mov_b32 s{b+3}, 0x20000")
    srdQS, srdOS = f"s[{sQS}:{sQS+3}]", f"s[{sOS}:{sOS+3}]"
    e(f"s_lshl_b32 s30, s24, 10"); e(f"v_lshlrev_b32 v{vH}, 4, v{vL}")
    e(f"s_cmp_eq_u32 s25, 1"); e("s_cbranch_scc1 K1_SIDE_VO")
    snap = E.snapshot()
    AX = lambda js: js * 4; AY = lambda js: 24 + js * 4; BB = lambda js: 48 + js * 4
    DX, DY = 72, 76
    e(f"s_add_u32 s30, s30, {WS_WQK}")
    e(f"v_lshrrev_b32 v{t0}, 2, v{vI}"); e(f"v_and_b32 v{t1}, 3, v{vI}")
    e(f"v_lshl_add_u32 v{t0}, v{t0}, 3, v{t1}")
    e(f"s_lshl_b32 s31, s28, 5"); e(f"v_add_u32 v{t2}, s31, v{t0}")
    e(f"v_mul_u32_u24 v{t2}, 1152, v{t2}"); e(f"v_lshl_add_u32 v{t2}, v{vG}, 4, v{t2}")
    e(f"v_add_u32 v{t3}, {4*1152}, v{t2}")
    e(f"s_mul_i32 s31, s26, 3"); e(f"s_add_u32 s31, s31, s29")
    e(f"s_lshr_b32 s32, s31, 1"); e(f"s_lshl_b32 s32, s32, 5"); e(f"s_and_b32 s31, s31, 1"); e(f"s_lshl_b32 s31, s31, 2"); e(f"s_add_u32 s31, s31, s32")
    e(f"v_add_u32 v{t0}, s31, v{t0}"); e(f"v_mul_u32_u24 v{t0}, 1152, v{t0}"); e(f"v_lshl_add_u32 v{t0}, v{vG}, 4, v{t0}")
    for js in range(6):
        e(f"buffer_load_dwordx4 {vr(AX(js),4)}, v{t2}, {srdQS}, 0 offen offset:{js*64}")
        e(f"buffer_load_dwordx4 {vr(AY(js),4)}, v{t3}, {srdQS}, 0 offen offset:{js*64}")
        e(f"buffer_load_dwordx4 {vr(BB(js),4)}, v{t0}, {srdQS}, 0 offen offset:{384 + js*64}")
    for js in range(6):
        e(f"{MF} {vr(DX,4)}, {vr(AX(js),4)}, {vr(BB(js),4)}, {'0' if js == 0 else vr(DX,4)}")
        e(f"{MF} {vr(DY,4)}, {vr(AY(js),4)}, {vr(BB(js),4)}, {'0' if js == 0 else vr(DY,4)}")
    for r in range(8): e(f"v_mul_f32 v{DX+r}, {hex(cs)}, v{DX+r}")
    for p in range(4): e(f"v_cvt_pk_bf16_f32 v{DX+p}, v{DX+2*p}, v{DX+2*p+1}")
    e(f"buffer_store_dwordx4 {vr(DX,4)}, v{vH}, {srdWS}, s30 offen")
    e("s_endpgm")
    E.label("K1_SIDE_VO"); E.restore(snap)
    e(f"s_add_u32 s30, s30, {WS_WVO}")
    e(f"s_lshl_b32 s31, s28, 5"); e(f"v_add_u32 v{t2}, s31, v{vI}")
    e(f"v_mul_u32_u24 v{t2}, 1152, v{t2}"); e(f"v_lshl_add_u32 v{t2}, v{vG}, 4, v{t2}")
    e(f"v_add_u32 v{t3}, {16*1152}, v{t2}")
    e(f"v_lshrrev_b32 v{t0}, 2, v{vI}"); e(f"v_and_b32 v{t1}, 3, v{vI}")
    e(f"s_cmp_eq_u32 s29, 2"); e(f"s_cselect_b32 s31, 2, 3"); e(f"s_cselect_b32 s32, 32, 0")
    e(f"s_lshl_b32 s33, s29, 2"); e(f"s_cselect_b32 s33, s33, s33")
    e(f"s_cmp_eq_u32 s29, 2"); e(f"s_cselect_b32 s33, 0, s33")
    e(f"s_add_u32 s32, s32, s33"); e(f"s_mul_i32 s33, s26, 48"); e(f"s_add_u32 s32, s32, s33")
    e(f"v_lshlrev_b32 v{t0}, s31, v{t0}"); e(f"v_add_u32 v{t0}, v{t0}, v{t1}"); e(f"v_add_u32 v{t0}, s32, v{t0}")
    e(f"v_lshlrev_b32 v{t0}, 1, v{t0}")
    e(f"v_mul_u32_u24 v{t1}, {8*384}, v{vG}"); e(f"v_add_u32 v{t0}, v{t0}, v{t1}")
    for js in range(6):
        e(f"buffer_load_dwordx4 {vr(AX(js),4)}, v{t2}, {srdQS}, 0 offen offset:{768 + js*64}")
        e(f"buffer_load_dwordx4 {vr(AY(js),4)}, v{t3}, {srdQS}, 0 offen offset:{768 + js*64}")
    G = lambda js, s: 80 + js * 8 + s
    for js in range(6):
        e(f"s_mov_b32 s31, {js*32*384}")
        for s in range(8):
            e(f"buffer_load_ushort v{G(js,s)}, v{t0}, {srdOS}, s31 offen offset:{s*384}")
        if js == 3: E.wait(vm=20)
    for js in range(6):
        for p in range(4):
            e(f"v_lshl_or_b32 v{BB(js)+p}, v{G(js,2*p+1)}, 16, v{G(js,2*p)}")
        e(f"{MF} {vr(DX,4)}, {vr(AX(js),4)}, {vr(BB(js),4)}, {'0' if js == 0 else vr(DX,4)}")
        e(f"{MF} {vr(DY,4)}, {vr(AY(js),4)}, {vr(BB(js),4)}, {'0' if js == 0 else vr(DY,4)}")
    for p in range(4): e(f"v_cvt_pk_bf16_f32 v{DX+p}, v{DX+2*p}, v{DX+2*p+1}")
    e(f"buffer_store_dwordx4 {vr(DX,4)}, v{vH}, {srdWS}, s30 offen")
    E.label("K1_EXIT")
    e("s_endpgm")
    kd = """
.section .rodata,"a"
.p2align 6
.amdhsa_kernel k1_kernel
  .amdhsa_next_free_vgpr 512
  .amdhsa_next_free_sgpr 100
  .amdhsa_accum_offset 256
  .amdhsa_group_segment_fixed_size 0
  .amdhsa_kernarg_size 64
  .amdhsa_user_sgpr_count 2
  .amdhsa_user_sgpr_kernarg_segment_ptr 1
  .amdhsa_system_sgpr_workgroup_id_x 1
  .amdhsa_float_denorm_mode_32 3
.end_amdhsa_kernel
.text
"""
    return E, kd

if __name__ == "__main__":
    import sys
    E, kd = gen_k1()
    print(E.text())
    print("; nins", E.nins, "nops", E.nops, "waits", E.waits, "lds", LDS1, file=sys.stderr)
```

```python
from asmgen import *
from layout import *

NB, DPF = 6, 4
O = lambda dt, qt: (dt * 3 + qt) * 4
S = lambda b, qt, kt: 144 + b * 24 + qt * 8 + kt * 4
NEGM = lambda qt: 192 + 4 * qt
vKE, vKO = 204, 205
vV = [206, 207, 208, 209]
vD = [210, 211, 212]
vPW = 213
RES = lambda qt: 214 + 6 * qt
STT = lambda qt: 232 + 2 * qt
SH = 238
vL, vI, vG = 242, 243, 244
vR4, vR2, vI8 = 245, 246, 247
vT0 = 248
aQ = lambda ks, qt: (ks * 3 + qt) * 4
aL = lambda qt: 72 + 4 * qt
aONE = 84
aB = lambda n: 88 + 4 * (n % NB)
aHK = lambda ks: 112 + 4 * ks
aHV = lambda dt: 136 + 2 * dt
aW = lambda ks, nt: 160 + (ks * 3 + nt) * 4
aSEL = 232
sWS = 4
sOUT = 8
sW, sT, sQB, sWB = 12, 13, 14, 15
sCH = lambda j: 16 + j
sRETRY = 26
sG = lambda qt: 27 + qt
sST = lambda qt: 30 + qt
sWVO = 33
sTMP = 36
sDBG = 48
RING = 36864
HC = 147456
LX = HC + 6144
OB = 30720

class Gap:
    def __init__(self): self.pre = []; self.mem = []; self.valu = []
    def emit(self):
        for f in self.pre: f()
        for f in self.mem: f()
        for f in self.valu: f()

def gen_k2(stamps=False, nq=27, X=None):
    X = X or {}
    E = Emitter("k2"); e = E.e
    MF = "v_mfma_f32_16x16x32_bf16"
    MF16 = "v_mfma_f32_16x16x16_bf16"
    nstamp = [0]
    def stamp(name):
        if not stamps: return
        k = nstamp[0]; nstamp[0] += 1
        e(f"s_memtime s[{50+2*k}:{51+2*k}]")
        gen_k2.stamp_names.append(name)
    gen_k2.stamp_names = []
    E.raw(".globl k2_kernel\n.p2align 8\n.type k2_kernel,@function\nk2_kernel:")
    e(f"s_cmp_ge_u32 s2, {8*nq}")
    e("s_cbranch_scc1 K2_EXIT")
    if stamps: e("s_memtime s[50:51]"); nstamp[0] = 1; gen_k2.stamp_names.append("entry"); e("s_memrealtime s[96:97]")
    e(f"s_load_dwordx2 s[{sWS}:{sWS+1}], s[0:1], 56")
    e(f"s_load_dwordx2 s[{sOUT}:{sOUT+1}], s[0:1], 40")
    if stamps: e(f"s_load_dwordx2 s[{sDBG}:{sDBG+1}], s[0:1], 56")
    e(f"v_lshrrev_b32 v{vT0}, 6, v0")
    e(f"v_and_b32 v{vL}, 63, v0")
    e(f"v_readfirstlane_b32 s{sW}, v{vT0}")
    e(f"v_and_b32 v{vI}, 15, v{vL}")
    e(f"v_lshrrev_b32 v{vG}, 4, v{vL}")
    e(f"s_and_b32 s{sT}, s2, 7")
    e(f"s_lshr_b32 s{sQB}, s2, 3")
    e(f"v_lshlrev_b32 v{vD[0]}, 4, v{vL}")
    e(f"v_add_u32 v{vD[1]}, 0x1000, v{vD[0]}")
    e(f"v_add_u32 v{vD[2]}, 0x2000, v{vD[0]}")
    e(f"s_mul_i32 s{sWB}, s{sW}, {RING}")
    e(f"s_mul_i32 s36, s{sT}, {FS}")
    e(f"s_mul_i32 s37, s{sQB}, 3")
    for qt in range(3):
        e(f"s_add_u32 s38, s37, {qt}")
        e(f"s_lshr_b32 s39, s38, 1")
        e(f"s_mul_i32 s39, s39, {CH}")
        e(f"s_and_b32 s38, s38, 1")
        e(f"s_lshl_b32 s38, s38, 11")
        e(f"s_add_u32 s39, s39, s38")
        e(f"s_add_u32 s{sG(qt)}, s39, s36")
    e(f"s_add_u32 s40, s36, {40*CH}")
    e(f"s_mov_b32 s41, {HC}")
    e(f"s_cmp_eq_u32 s{sW}, 0"); e(f"s_cselect_b32 s40, s{sG(0)}, s40"); e(f"s_cselect_b32 s41, {24576}, s41")
    e(f"s_cmp_eq_u32 s{sW}, 1"); e(f"s_cselect_b32 s40, s{sG(1)}, s40"); e(f"s_cselect_b32 s41, {30720}, s41")
    e(f"s_cmp_eq_u32 s{sW}, 2"); e(f"s_cselect_b32 s40, s{sG(2)}, s40"); e(f"s_cselect_b32 s41, {61440}, s41")
    e(f"s_mul_i32 s42, s{sW}, 18432")
    e(f"s_add_u32 s{sWVO}, s42, {WS_WVO}")
    e(f"s_add_u32 s{sWVO+1}, s42, {WS_WVO + 12288}")
    e(f"s_add_u32 s43, s42, {WS_WQK + 12288}")
    e(f"s_add_u32 s42, s42, {WS_WQK}")
    e(f"s_mul_i32 s44, s{sW}, {10*CH}")
    e(f"s_add_u32 s44, s44, s36")
    e(f"s_cmp_ge_u32 s{sQB}, 20"); e(f"s_cselect_b32 s45, 20, 0")
    e(f"s_cmp_ge_u32 s{sQB}, 10"); e(f"s_cselect_b32 s46, 10, 0"); e(f"s_max_u32 s45, s45, s46")
    e(f"s_sub_u32 s45, s{sQB}, s45")
    for j in range(10):
        e(f"s_add_u32 s46, s45, {j}")
        e(f"s_cmp_ge_u32 s46, 10"); e(f"s_cselect_b32 s47, 10, 0"); e(f"s_sub_u32 s46, s46, s47")
        e(f"s_mul_i32 s46, s46, {CH}")
        e(f"s_add_u32 s{sCH(j)}, s46, s44")
    stamp("pre_karg")
    E.waitfor(rd=[f"s[{sWS}:{sWS+1}]", f"s[{sOUT}:{sOUT+1}]"])
    stamp("karg")
    e(f"s_and_b32 s{sWS+1}, s{sWS+1}, 0xffff"); e(f"s_mov_b32 s{sWS+2}, {WS_END}"); e(f"s_mov_b32 s{sWS+3}, 0x20000")
    e(f"s_and_b32 s{sOUT+1}, s{sOUT+1}, 0xffff"); e(f"s_mov_b32 s{sOUT+2}, {T*XFS}"); e(f"s_mov_b32 s{sOUT+3}, 0x20000")
    srd = f"s[{sWS}:{sWS+3}]"
    for cb in range(3):
        e(f"s_add_u32 m0, s41, {cb*2048}")
        for h in range(2):
            e(f"buffer_load_dwordx4 v{vD[cb]}, {srd}, s40 offen offset:{h*1024} lds", wr=["L:tile"])
    stamp("tile_iss")
    for p in range(18):
        so, q = (42, p) if p < 12 else (43, p - 12)
        e(f"buffer_load_dwordx4 v[{4*p}:{4*p+3}], v{vD[q>>2]}, {srd}, s{so} offen offset:{(q&3)*1024}")
    stamp("wqk_iss")
    def dma(c, cb, q):
        slot = c % 3
        def f():
            e(f"buffer_load_dwordx4 v{vD[cb]}, {srd}, s{sCH(c)} offen offset:{q*1024} lds", wr=[f"L:s{slot}c{cb}"])
        return f
    def setm0(c, cb):
        return lambda: e(f"s_add_u32 m0, s{sWB}, {(c % 3)*12288 + cb*4096}")
    def dma_chunk_now(c):
        for cb in range(3):
            setm0(c, cb)()
            for q in range(4): dma(c, cb, q)()
    dma_chunk_now(0); stamp('c0_iss'); dma_chunk_now(1)
    stamp("issued")
    t0, t1, t2, t3 = vT0, vT0 + 1, vT0 + 2, vT0 + 3
    e(f"v_and_b32 v{t0}, 6, v{vI}")
    e(f"v_xor_b32 v{t0}, v{t0}, v{vG}")
    e(f"v_lshlrev_b32 v{t0}, 4, v{t0}")
    e(f"v_lshl_add_u32 v{t0}, v{vI}, 7, v{t0}")
    e(f"v_add_u32 v{vKE}, s{sWB}, v{t0}")
    e(f"v_xor_b32 v{vKO}, 64, v{vKE}")
    TE, TO, HE, HO, QR = 144, 145, 146, 147, 148
    HV = [149, 150, 151, 152]; QW = [153, 154, 155]
    e(f"v_add_u32 v{TE}, {24576}, v{t0}")
    e(f"v_xor_b32 v{TO}, 64, v{TE}")
    e(f"v_add_u32 v{HE}, {HC}, v{t0}")
    e(f"v_xor_b32 v{HO}, 64, v{HE}")
    e(f"v_lshrrev_b32 v{t1}, 2, v{vI}")
    e(f"v_lshl_add_u32 v{t1}, v{vG}, 2, v{t1}")
    e(f"v_and_b32 v{t2}, 6, v{t1}")
    e(f"v_lshlrev_b32 v{t2}, 4, v{t2}")
    e(f"v_lshl_add_u32 v{t2}, v{t1}, 7, v{t2}")
    e(f"v_and_b32 v{t3}, 3, v{vI}")
    e(f"v_lshl_add_u32 v{t2}, v{t3}, 3, v{t2}")
    for m in range(4):
        e(f"v_xor_b32 v{t3}, {32*m}, v{t2}")
        e(f"v_add_u32 v{vV[m]}, s{sWB}, v{t3}")
        e(f"v_add_u32 v{HV[m]}, {HC}, v{t3}")
    e(f"v_add_u32 v{QR}, {98304}, v{vD[0]}")
    for ct in range(3):
        e(f"s_mul_i32 s36, s{sW}, 3"); e(f"s_add_u32 s36, s36, {ct}")
        e(f"s_lshr_b32 s37, s36, 1"); e(f"s_mul_i32 s38, s37, 3072")
        e(f"s_cmp_ge_u32 s37, 4"); e(f"s_cselect_b32 s39, {135168 - 4*3072 - 98304}, 0")
        e(f"s_add_u32 s38, s38, s39"); e(f"s_add_u32 s38, s38, 98304"); e(f"s_and_b32 s36, s36, 1"); e(f"s_lshl_b32 s36, s36, 3"); e(f"s_add_u32 s38, s38, s36")
        e(f"v_add_u32 v{QW[ct]}, s38, v{vD[0]}")
    e(f"s_mul_i32 s36, s{sW}, 6")
    def h2off(dst, c16reg):
        e(f"v_and_b32 v{t1}, 7, v{c16reg}")
        e(f"v_and_b32 v{t2}, 6, v{vI}")
        e(f"v_xor_b32 v{t1}, v{t1}, v{t2}")
        e(f"v_lshlrev_b32 v{t1}, 4, v{t1}")
        e(f"v_lshl_add_u32 v{t1}, v{vI}, 7, v{t1}")
        e(f"v_lshrrev_b32 v{t2}, 3, v{c16reg}")
        e(f"v_lshl_add_u32 v{dst}, v{t2}, 12, v{t1}")
    e(f"v_add_u32 v{t0}, s36, v{vG}")
    h2off(vR4, t0)
    e(f"v_lshrrev_b32 v{t0}, 1, v{vG}")
    e(f"s_add_u32 s36, s36, 4")
    e(f"v_add_u32 v{t0}, s36, v{t0}")
    h2off(vR2, t0)
    e(f"v_and_b32 v{t0}, 1, v{vG}")
    e(f"v_lshl_add_u32 v{vR2}, v{t0}, 3, v{vR2}")
    e(f"v_lshlrev_b32 v{vI8}, 3, v{vI}")
    e(f"s_mul_i32 s36, s{sT}, {N}"); e(f"s_mul_i32 s37, s{sQB}, 48"); e(f"s_add_u32 s36, s36, s37"); e(f"s_lshl_b32 s36, s36, 3")
    for qt in range(3): e(f"s_add_u32 s{sST(qt)}, s36, {WS_STAT + qt*128}")
    e(f"v_lshlrev_b32 v{t0}, 3, v{vL}")
    e(f"s_add_u32 s36, s{sWB}, 12288")
    e(f"v_add_u32 v{vPW}, s36, v{t0}")
    e(f"v_mov_b32 v{t0}, 0x3f803f80")
    for k in range(4): e(f"v_accvgpr_write_b32 a{aONE+k}, v{t0}")
    e(f"v_lshrrev_b32 v{t0}, 2, v{vI}")
    e(f"v_cmp_eq_u32 vcc, v{t0}, v{vG}")
    e(f"v_and_b32 v{t1}, 1, v{vI}")
    e(f"v_mov_b32 v{t2}, 0x3f80")
    e(f"v_lshlrev_b32 v{t1}, 4, v{t1}")
    e(f"v_lshlrev_b32 v{t2}, v{t1}, v{t2}")
    e(f"v_cndmask_b32 v{t2}, 0, v{t2}, vcc")
    e(f"v_and_b32 v{t1}, 2, v{vI}")
    e(f"v_cmp_eq_u32 vcc, 0, v{t1}")
    e(f"v_cndmask_b32 v{t0}, 0, v{t2}, vcc")
    e(f"v_cndmask_b32 v{t1}, v{t2}, 0, vcc") if False else None
    e(f"v_cmp_ne_u32 vcc, 0, v{t1}")
    e(f"v_cndmask_b32 v{t1}, 0, v{t2}, vcc")
    e(f"v_accvgpr_write_b32 a{aSEL}, v{t0}"); e(f"v_accvgpr_write_b32 a{aSEL+1}, v{t1}")
    e(f"v_accvgpr_write_b32 a{aSEL+2}, v{t0}"); e(f"v_accvgpr_write_b32 a{aSEL+3}, v{t1}")
    for k in range(12): e(f"v_mov_b32 v{192+k}, 0")
    e(f"s_mov_b32 s{sRETRY}, 0")
    E.waitfor(rd=["L:tile"])
    e("s_barrier")
    stamp("tile")
    for ks in range(6):
        for qt in range(3):
            idx = qt * 3 + (ks >> 1)
            off = idx * 2048 if idx < 6 else 36864 + (idx - 6) * 2048
            e(f"ds_read_b128 {ar(aW(ks,qt),4)}, v{TO if ks&1 else TE} offset:{off}")
    ACC = lambda ct, qt: 72 + (ct * 3 + qt) * 4
    for ks in range(6):
        for ct in range(3):
            for qt in range(3):
                c = "0" if ks == 0 else vr(ACC(ct, qt), 4)
                e(f"{MF} {vr(ACC(ct,qt),4)}, {vr((ks*3+ct)*4,4)}, {ar(aW(ks,qt),4)}, {c}")
    stamp("qgemm")
    for ct in range(3):
        for qt in range(3):
            a = ACC(ct, qt)
            e(f"v_cvt_pk_bf16_f32 v{a}, v{a}, v{a+1}")
            e(f"v_cvt_pk_bf16_f32 v{a+1}, v{a+2}, v{a+3}")
            e(f"ds_write_b64 v{QW[ct]}, {vr(a,2)} offset:{qt*1024}")
    E.wait(lgkm=0)
    e("s_barrier")
    for ks in range(6):
        for qt in range(3):
            off = (ks * 3072 if ks < 4 else 36864 + (ks - 4) * 3072) + qt * 1024
            e(f"ds_read_b128 {ar(aQ(ks,qt),4)}, v{QR} offset:{off}")
    for ks in range(6):
        e(f"ds_read_b128 {ar(aHK(ks),4)}, v{HO if ks&1 else HE} offset:{(ks>>1)*2048}")
    for dt in range(12):
        e(f"ds_read_b64_tr_b16 {ar(aHV(dt),2)}, v{HV[dt&3]} offset:{(dt>>2)*2048}")
    E.wait(lgkm=0)
    e("s_barrier")
    stamp("qready")
    E.label("K2_RUN")
    run_state = (len(E.vm))
    frags = []
    for c in range(10):
        if c == 0: frags += [("K", 0, gi) for gi in range(12)]
        if c + 1 <= 9: frags += [("K", c + 1, gi) for gi in range(12)]
        frags += [("V", c, gi) for gi in range(12)]
    def read_frag(n):
        kind, c, gi = frags[n]; slot = c % 3; b = aB(n)
        if kind == "K":
            ks, kt = gi >> 1, gi & 1
            return [lambda: e(f"ds_read_b128 {ar(b,4)}, v{vKO if ks&1 else vKE} offset:{slot*12288 + (ks>>1)*4096 + kt*2048}", rd=[f"L:s{slot}c{ks>>1}"])]
        dt = gi
        return [lambda hh=hh: e(f"ds_read_b64_tr_b16 {ar(b+2*hh,2)}, v{vV[dt&3]} offset:{slot*12288 + (dt>>2)*4096 + hh*2048}", rd=[f"L:s{slot}c{dt>>2}"]) for hh in range(2)]
    def exp_item(c, k):
        qt, kt, r = k >> 3, (k >> 2) & 1, k & 3
        reg = S(c & 1, qt, kt) + r
        return lambda: e(f"v_exp_f32 v{reg}, v{reg}")
    def cvt_item(c, qt, p):
        base = S(c & 1, qt, 0); src = base + 2 * p
        return lambda: e(f"v_cvt_pk_bf16_f32 v{base+p}, v{src}, v{src+1}")
    fn = [0]
    def put_reads(gap):
        n = fn[0] + DPF
        if n < len(frags): gap.mem += read_frag(n)
    def wait_next(gap):
        n = fn[0] + 1
        if n < len(frags):
            b = aB(n)
            gap.pre.append(lambda: E.waitfor(rd=[ar(b, 4)]))
    def phase_qk(c, plan):
        for gi in range(12):
            ks, kt = gi >> 1, gi & 1
            n = fn[0]; assert frags[n] == ("K", c, gi)
            gaps = [Gap(), Gap(), Gap()]
            put_reads(gaps[0]); wait_next(gaps[2])
            plan(gi, gaps)
            for qt in range(3):
                d = vr(S(c & 1, qt, kt), 4)
                cc = vr(NEGM(qt), 4) if ks == 0 else d
                e(f"{MF} {d}, {ar(aB(n),4)}, {ar(aQ(ks,qt),4)}, {cc}")
                gaps[qt].emit()
            fn[0] += 1
    def phase_pv(c, planL, plan):
        first = (c == 0)
        for qt in range(3):
            g = Gap(); planL(qt, g)
            P = vr(S(c & 1, qt, 0), 4)
            e(f"{MF} {ar(aL(qt),4)}, {ar(aONE,4)}, {P}, {'0' if first else ar(aL(qt),4)}")
            g.emit()
        for gi in range(12):
            n = fn[0]; assert frags[n] == ("V", c, gi)
            gaps = [Gap(), Gap(), Gap()]
            put_reads(gaps[0]); wait_next(gaps[2])
            plan(gi, gaps)
            for qt in range(3):
                d = vr(O(gi, qt), 4)
                e(f"{MF} {d}, {ar(aB(n),4)}, {vr(S(c&1,qt,0),4)}, {'0' if first else d}")
                gaps[qt].emit()
            fn[0] += 1
    def put_dma(gap, c, k):
        cb, q = k >> 2, k & 3
        if X.get('nodma'): return
        if q == 0: gap.pre.append(setm0(c, cb))
        gap.mem.append(dma(c, cb, q))
    extra = []
    for p in range(18):
        so, q = (sWVO, p) if p < 12 else (sWVO + 1, p - 12)
        extra.append(lambda p=p, so=so, q=q: e(f"buffer_load_dwordx4 {ar(160+4*p,4)}, v{vD[q>>2]}, {srd}, s{so} offen offset:{(q&3)*1024}"))
    for qt in range(3):
        extra.append(lambda qt=qt: e(f"buffer_load_dwordx4 {vr(RES(qt),4)}, v{vR4}, {srd}, s{sG(qt)} offen"))
        extra.append(lambda qt=qt: e(f"buffer_load_dwordx2 {vr(RES(qt)+4,2)}, v{vR2}, {srd}, s{sG(qt)} offen"))
        extra.append(lambda qt=qt: e(f"buffer_load_dwordx2 {vr(STT(qt),2)}, v{vI8}, {srd}, s{sST(qt)} offen"))
    def variant(tag, body):
        e(f"s_cmp_eq_u32 s{sW}, 3"); e(f"s_cbranch_scc1 K2_{tag}_END")
        states = [E.snapshot()]
        e(f"s_cmp_eq_u32 s{sW}, 1"); e(f"s_cbranch_scc1 K2_{tag}_1")
        e(f"s_cmp_eq_u32 s{sW}, 2"); e(f"s_cbranch_scc1 K2_{tag}_2")
        snap = E.snapshot()
        for w in range(3):
            E.restore(snap)
            if w: E.label(f"K2_{tag}_{w}")
            body(w)
            if w < 2: e(f"s_branch K2_{tag}_END")
            states.append(E.snapshot())
        E.merge(states)
        E.label(f"K2_{tag}_END")
    for n in range(DPF):
        for f in read_frag(n): f()
    def qkh(w):
        for ks in range(6):
            cc = vr(NEGM(w), 4) if ks == 0 else vr(SH, 4)
            e(f"{MF} {vr(SH,4)}, {ar(aHK(ks),4)}, {ar(aQ(ks,w),4)}, {cc}")
    variant("QKH", qkh)
    E.waitfor(rd=[ar(aB(0), 4)])
    def plan(gi, gaps):
        put_dma(gaps[2], 2, gi)
        if 3 <= gi < 7: gaps[1].valu.append(lambda r=gi-3: e(f"v_exp_f32 v{SH+r}, v{SH+r}"))
        if gi == 8: gaps[1].valu.append(lambda: e(f"v_cvt_pk_bf16_f32 v{SH}, v{SH}, v{SH+1}"))
        if gi == 9: gaps[1].valu.append(lambda: e(f"v_cvt_pk_bf16_f32 v{SH+1}, v{SH+2}, v{SH+3}"))
    phase_qk(0, plan)
    stamp("qk0")
    xi = [0]
    def put_extra(gap):
        if X.get('noextra'): xi[0] = len(extra); return
        if xi[0] < len(extra):
            gap.mem.append(extra[xi[0]]); xi[0] += 1
    for j in range(10):
        c = j + 1
        if c <= 9:
            if j == 0:
                def plan(gi, gaps):
                    gaps[1].valu.append(exp_item(0, 2 * gi)); gaps[2].valu.append(exp_item(0, 2 * gi + 1))
                    if gi >= 1: gaps[0].valu.append(cvt_item(0, (gi - 1) >> 2, (gi - 1) & 3))
                phase_qk(c, plan)
                cvt_item(0, 2, 3)()
            else:
                def plan(gi, gaps):
                    if gi <= 8: gaps[1].valu.append(exp_item(j, 15 + gi))
                    if 1 <= gi <= 4: gaps[0].valu.append(cvt_item(j, 1, gi - 1))
                    if 5 <= gi <= 7: gaps[0].valu.append(cvt_item(j, 2, gi - 5))
                    if gi == 9: gaps[2].valu.append(cvt_item(j, 2, 3))
                    if j + 2 <= 9:
                        if gi <= 8: put_dma(gaps[2], j + 2, gi)
                        else: put_dma(gaps[1], j + 2, gi)
                phase_qk(c, plan)
        if c <= 8 or c == 9:
            last = (c == 9)
            def planL(qt, g): g.valu.append(exp_item(c, qt))
            def plan(gi, gaps):
                if not last:
                    gaps[1].valu.append(exp_item(c, 3 + gi))
                    if 5 <= gi <= 8: gaps[2].valu.append(cvt_item(c, 0, gi - 5))
                    elif 1 <= j <= 5: put_extra(gaps[2])
                else:
                    k = 3 + 2 * gi
                    if k < 24: gaps[1].valu.append(exp_item(c, k))
                    if k + 1 < 24: gaps[2].valu.append(exp_item(c, k + 1))
                    for qt in range(3):
                        for p in range(4):
                            done = 8 * qt + 2 * p + 1
                            gdone = (done - 3) // 2 if done >= 3 else -1
                            if min(gdone + 1, 11) == gi: gaps[0].valu.append(cvt_item(c, qt, p))
            phase_pv(j, planL, plan)
        else:
            pend = []
            for dt in range(12):
                for qt in range(3):
                    a = O(dt, qt)
                    pend.append((dt, qt, a))
            items = []
            def mk(dt, qt):
                a = O(dt, qt)
                return [lambda: e(f"v_cvt_pk_bf16_f32 v{a}, v{a}, v{a+1}"),
                        lambda: e(f"v_cvt_pk_bf16_f32 v{a+1}, v{a+2}, v{a+3}"),
                        lambda: e(f"ds_write_b64 v{vPW}, {vr(a,2)} offset:{(dt*3+qt)*512}", wr=["L:part"])]
            cv = []; wq = []
            for (dt, qt, a) in pend:
                m = mk(dt, qt); cv.append((dt, m[0])); cv.append((dt, m[1])); wq.append((dt, m[2]))
            st = {"c": 0, "w": 0}
            def planL(qt, g): pass
            def plan(gi, gaps):
                for k in range(3):
                    g = gaps[k]
                    room = 2 - len(g.mem)
                    if room > 0 and st["w"] < len(wq) and 2 * (st["w"] + 1) <= st["c"]:
                        g.mem.append(wq[st["w"]][1]); st["w"] += 1; room -= 1
                    while room > 0 and st["c"] < len(cv) and cv[st["c"]][0] <= gi - 2:
                        g.valu.append(cv[st["c"]][1]); st["c"] += 1; room -= 1
            phase_pv(9, planL, plan)
            stamp("pv9")
            while st["c"] < len(cv) or st["w"] < len(wq):
                if st["w"] < len(wq) and 2 * (st["w"] + 1) <= st["c"]:
                    wq[st["w"]][1](); st["w"] += 1
                else:
                    cv[st["c"]][1](); st["c"] += 1
        if j == 0:
            def pvh(w):
                e(f"{MF16} {ar(aL(w),4)}, {ar(aONE,2)}, {vr(SH,2)}, {ar(aL(w),4)}")
                for dt in range(12):
                    e(f"{MF16} {vr(O(dt,w),4)}, {ar(aHV(dt),2)}, {vr(SH,2)}, {vr(O(dt,w),4)}")
            variant("PVH", pvh)
        if j in X.get('itstamps', (0, 4, 8)): stamp(f"it{j}")
    assert xi[0] == len(extra)
    tA = 144
    e(f"v_lshlrev_b32 v{tA}, 2, v{vI}")
    e(f"s_mul_i32 s36, s{sW}, 192"); e(f"s_add_u32 s36, s36, {LX}")
    e(f"v_add_u32 v{tA+1}, s36, v{tA}")
    e(f"v_add_u32 v{tA}, {LX}, v{tA}")
    for qt in range(3):
        e(f"ds_write_b32 v{tA+1}, a{aL(qt)} offset:{qt*64}", wr=["L:lx"])
    P0, P1, OW, OR = 146, 147, [148, 149, 150], 151
    e(f"v_lshlrev_b32 v{P0}, 3, v{vL}")
    e(f"s_mul_i32 s36, s{sW}, 4608"); e(f"s_add_u32 s36, s36, 12288")
    e(f"v_add_u32 v{P0}, s36, v{P0}")
    e(f"v_add_u32 v{P1}, {2*RING}, v{P0}")
    for nt in range(3):
        e(f"s_mul_i32 s36, s{sW}, 3"); e(f"s_add_u32 s36, s36, {nt}")
        e(f"s_lshr_b32 s37, s36, 1"); e(f"s_mul_i32 s37, s37, 3072"); e(f"s_and_b32 s36, s36, 1"); e(f"s_lshl_b32 s36, s36, 3")
        e(f"s_add_u32 s36, s36, s37"); e(f"s_add_u32 s36, s36, {OB}")
        e(f"v_add_u32 v{OW[nt]}, s36, v{vD[0]}")
    e(f"v_add_u32 v{OR}, {OB}, v{vD[0]}")
    E.wait(lgkm=0)
    e("s_barrier")
    stamp("bar1")
    LT = 152
    for qt in range(3):
        for w in range(4):
            e(f"ds_read_b32 v{LT+qt*4+w}, v{tA} offset:{w*192+qt*64}")
    first_reads = []
    for nt in range(3):
        for qt in range(3):
            tl = nt * 3 + qt
            for src in range(4):
                adr = P0 if src < 2 else P1
                first_reads.append(f"ds_read_b64 {vr(tl*8+2*src,2)}, v{adr} offset:{(src&1)*RING + tl*512}")
    for x in first_reads[:12]: e(x)
    RL = 164
    for qt in range(3):
        e(f"v_add_f32 v{LT+qt*4}, v{LT+qt*4}, v{LT+qt*4+1}")
        e(f"v_add_f32 v{LT+qt*4+2}, v{LT+qt*4+2}, v{LT+qt*4+3}")
        e(f"v_add_f32 v{LT+qt*4}, v{LT+qt*4}, v{LT+qt*4+2}")
    e(f"s_mov_b32 s36, 0x21800000")
    e(f"s_mov_b32 s37, 0x5f800000")
    e(f"s_mov_b64 s[38:39], exec")
    for qt in range(3):
        e(f"v_cmp_le_f32 vcc, s36, v{LT+qt*4}")
        e(f"s_and_b64 s[38:39], s[38:39], vcc")
        e(f"v_cmp_ge_f32 vcc, s37, v{LT+qt*4}")
        e(f"s_and_b64 s[38:39], s[38:39], vcc")
        e(f"v_rcp_f32 v{RL+qt}, v{LT+qt*4}")
    e(f"s_cmp_eq_u64 s[38:39], exec")
    e(f"s_cselect_b32 s36, 1, s{sRETRY}")
    e(f"s_cmp_eq_u32 s36, 0")
    e(f"s_cbranch_scc1 K2_FALLBACK")
    for x in first_reads[12:]: e(x)
    SUM = lambda tl: 72 + 4 * tl
    for tl in range(9):
        e(f"{MF} {vr(SUM(tl),4)}, {ar(aSEL,4)}, {vr(tl*8,4)}, 0")
        e(f"{MF} {vr(SUM(tl),4)}, {ar(aSEL,4)}, {vr(tl*8+4,4)}, {vr(SUM(tl),4)}")
    for tl in range(9):
        nt, qt = tl // 3, tl % 3
        a = SUM(tl)
        e(f"v_cvt_pk_bf16_f32 v{a}, v{a}, v{a+1}")
        e(f"v_cvt_pk_bf16_f32 v{a+1}, v{a+2}, v{a+3}")
        e(f"ds_write_b64 v{OW[nt]}, {vr(a,2)} offset:{qt*1024}")
    E.wait(lgkm=0)
    e("s_barrier")
    stamp("bar2")
    for ks in range(6):
        for qt in range(3):
            e(f"ds_read_b128 {vr((ks*3+qt)*4,4)}, v{OR} offset:{(ks*3+qt)*1024}")
    RF = lambda qt, j: 108 + qt * 12 + j
    resops = []
    for qt in range(3):
        for j in range(12):
            raw = RES(qt) + (j >> 1); d = RF(qt, j)
            if j & 1: resops.append(f"v_and_b32 v{d}, 0xffff0000, v{raw}")
            else: resops.append(f"v_lshlrev_b32 v{d}, 16, v{raw}")
            resops.append(f"v_fma_f32 v{d}, v{d}, v{STT(qt)+1}, v{STT(qt)}")
    O4, O2 = 168, 169
    resops = [f"v_mul_u32_u24 v{O4}, 384, v{vI}", f"v_lshl_add_u32 v{O2}, v{vG}, 3, v{O4}", f"v_lshl_add_u32 v{O4}, v{vG}, 4, v{O4}"] + resops
    e(f"s_mul_i32 s36, s{sT}, {XFS}"); e(f"s_mul_i32 s37, s{sQB}, {48*384}"); e(f"s_add_u32 s36, s36, s37")
    e(f"s_mul_i32 s37, s{sW}, 96"); e(f"s_add_u32 s36, s36, s37")
    e(f"s_add_u32 s37, s36, {16*384}"); e(f"s_add_u32 s38, s36, {32*384}")
    AC = lambda nt, qt: 72 + (qt * 3 + nt) * 4
    ri = 0
    for ks in range(6):
        for nt in range(3):
            for qt in range(3):
                d = vr(AC(nt, qt), 4)
                e(f"{MF} {d}, {ar(aW(ks,nt),4)}, {vr((ks*3+qt)*4,4)}, {'0' if ks == 0 else d}")
                for _ in range(2):
                    if ri < len(resops): e(resops[ri]); ri += 1
    while ri < len(resops): e(resops[ri]); ri += 1
    stamp("oproj")
    for qt in range(3):
        a = AC(0, qt)
        for j in range(12):
            e(f"v_fma_f32 v{a+j}, v{a+j}, v{RL+qt}, v{RF(qt,j)}")
        for p in range(6):
            e(f"v_cvt_pk_bf16_f32 v{a+p}, v{a+2*p}, v{a+2*p+1}")
        e(f"buffer_store_dwordx4 {vr(a,4)}, v{O4}, s[{sOUT}:{sOUT+3}], s{36+qt} offen")
        e(f"buffer_store_dwordx2 {vr(a+4,2)}, v{O2}, s[{sOUT}:{sOUT+3}], s{36+qt} offen offset:64")
    if stamps:
        stamp("end")
        e("s_memrealtime s[98:99]")
        E.wait(lgkm=0)
        e(f"s_lshl_b32 s36, s2, 2"); e(f"s_add_u32 s36, s36, s{sW}"); e(f"s_lshl_b32 s36, s36, 7")
        e(f"s_add_u32 s36, s36, {WS_END}")
        e(f"s_add_u32 s{sDBG}, s{sDBG}, s36"); e(f"s_addc_u32 s{sDBG+1}, s{sDBG+1}, 0")
        e(f"v_mov_b32 v1, 0")
        for k in range(1, nstamp[0]):
            e(f"s_sub_u32 s36, s{50+2*k}, s50"); e(f"v_mov_b32 v0, s36")
            e(f"global_store_dword v1, v0, s[{sDBG}:{sDBG+1}] offset:{4*k}")
        e(f"s_sub_u32 s36, s98, s96"); e(f"v_mov_b32 v0, s36")
        e(f"global_store_dword v1, v0, s[{sDBG}:{sDBG+1}] offset:124")
        e(f"v_mov_b32 v0, s96")
        e(f"global_store_dword v1, v0, s[{sDBG}:{sDBG+1}] offset:120")
    E.label("K2_EXIT")
    e("s_endpgm")
    E.label("K2_FALLBACK")
    E.vm = []; E.lg = []; E.settle()
    e("s_waitcnt vmcnt(0) lgkmcnt(0)")
    e("s_nop 7"); e("s_nop 7")
    MX = [144, 145, 146]; TS = 148
    for qt in range(3):
        for ks in range(6):
            e(f"{MF} {vr(TS+4*qt,4)}, {ar(aHK(ks),4)}, {ar(aQ(ks,qt),4)}, {'0' if ks == 0 else vr(TS+4*qt,4)}")
    for qt in range(3):
        a = TS + 4 * qt
        e(f"v_max3_f32 v{MX[qt]}, v{a}, v{a+1}, v{a+2}")
        e(f"v_max_f32 v{MX[qt]}, v{MX[qt]}, v{a+3}")
    e(f"s_mov_b32 s40, 0")
    e(f"s_mul_i32 s41, s{sW}, {10*CH}"); e(f"s_mul_i32 s42, s{sT}, {FS}"); e(f"s_add_u32 s41, s41, s42")
    E.wait_all(); e("s_nop 7")
    E.label("K2_FB_LOOP"); E.settle()
    for cb in range(3):
        e(f"s_add_u32 m0, s{sWB}, {cb*4096}")
        for q in range(4):
            e(f"buffer_load_dwordx4 v{vD[cb]}, {srd}, s41 offen offset:{q*1024} lds", wr=["L:fb"])
    for kt in range(2):
        for ks in range(6):
            e(f"ds_read_b128 {ar(88+4*ks,4)}, v{vKO if ks&1 else vKE} offset:{(ks>>1)*4096 + kt*2048}", rd=["L:fb"])
        for qt in range(3):
            for ks in range(6):
                e(f"{MF} {vr(TS+4*qt,4)}, {ar(88+4*ks,4)}, {ar(aQ(ks,qt),4)}, {'0' if ks == 0 else vr(TS+4*qt,4)}")
        for qt in range(3):
            a = TS + 4 * qt
            e(f"v_max3_f32 v{MX[qt]}, v{MX[qt]}, v{a}, v{a+1}")
            e(f"v_max3_f32 v{MX[qt]}, v{MX[qt]}, v{a+2}, v{a+3}")
    e(f"s_add_u32 s41, s41, {CH}"); e(f"s_add_u32 s40, s40, 1")
    E.wait_all(); e("s_nop 7")
    e(f"s_cmp_lt_u32 s40, 10"); e("s_cbranch_scc1 K2_FB_LOOP")
    for qt in range(3):
        m = MX[qt]; t = TS
        e(f"v_mov_b32 v{t}, v{m}"); e(f"v_permlane16_swap_b32 v{m}, v{t}"); e(f"v_max_f32 v{m}, v{m}, v{t}")
        e(f"v_mov_b32 v{t}, v{m}"); e(f"v_permlane32_swap_b32 v{m}, v{t}"); e(f"v_max_f32 v{m}, v{m}, v{t}")
    e(f"v_lshlrev_b32 v{TS}, 2, v{vI}")
    e(f"s_mul_i32 s36, s{sW}, 192"); e(f"s_add_u32 s36, s36, {LX + 1024}")
    e(f"v_add_u32 v{TS+1}, s36, v{TS}"); e(f"v_add_u32 v{TS}, {LX + 1024}, v{TS}")
    for qt in range(3): e(f"ds_write_b32 v{TS+1}, v{MX[qt]} offset:{qt*64}")
    E.wait(lgkm=0); e("s_barrier")
    for qt in range(3):
        for w in range(4): e(f"ds_read_b32 v{TS+2+qt*4+w}, v{TS} offset:{w*192+qt*64}")
    for qt in range(3):
        a = TS + 2 + qt * 4
        e(f"v_max3_f32 v{a}, v{a}, v{a+1}, v{a+2}"); e(f"v_max_f32 v{a}, v{a}, v{a+3}")
        for k in range(4): e(f"v_sub_f32 v{NEGM(qt)+k}, 0, v{a}")
    e(f"s_mov_b32 s{sRETRY}, 1")
    E.wait_all()
    e("s_barrier")
    dma_chunk_now(0); dma_chunk_now(1)
    e("s_nop 7")
    e("s_branch K2_RUN")
    kd = """
.section .rodata,"a"
.p2align 6
.amdhsa_kernel k2_kernel
  .amdhsa_next_free_vgpr 512
  .amdhsa_next_free_sgpr 100
  .amdhsa_accum_offset 256
  .amdhsa_group_segment_fixed_size 0
  .amdhsa_kernarg_size 64
  .amdhsa_user_sgpr_count 2
  .amdhsa_user_sgpr_kernarg_segment_ptr 1
  .amdhsa_system_sgpr_workgroup_id_x 1
  .amdhsa_float_denorm_mode_32 3
.end_amdhsa_kernel
.text
"""
    return E, kd

if __name__ == "__main__":
    E, kd = gen_k2()
    print(E.text())
    import sys
    print("; nins", E.nins, "nops", E.nops, "waits", E.waits, file=sys.stderr)
```

```python
import sys
from layout import *
import k1, k2
HEAD = """; TimeSformer divided space-time attention block (temporal attention + spatial attention), gfx950.
"""
def assemble(launches, parts):
    s = HEAD
    for (k, g, b, lds) in launches:
        s += f"; @launch kernel={k} grid=({g},1,1) block=({b},1,1) lds={lds}\n"
    s += '.amdgcn_target "amdgcn-amd-amdhsa--gfx950"\n.text\n'
    kds = ""
    for (E, kd) in parts:
        s += E.text(); kds += kd
    return s + kds
def k2_only(stamps=False, X=None):
    return assemble([("k2_kernel", 216, 256, 163840)], [k2.gen_k2(stamps=stamps, X=X)])

def k1_only(stamps=False, X=None):
    return assemble([("k1_kernel", 252, 256, k1.LDS1)], [k1.gen_k1(stamps=stamps, X=X)])
def full(stamps=False, X1=None, X2=None):
    return assemble([("k1_kernel", 252, 256, k1.LDS1), ("k2_kernel", 216, 256, 163840)],
                    [k1.gen_k1(stamps=stamps, X=X1), k2.gen_k2(stamps=stamps, X=X2)])
if __name__ == "__main__":
    open(sys.argv[1], "w").write(full())
```

```python
from asmgen import *
from layout import *

MF = "v_mfma_f32_16x16x32_bf16"
MF16 = "v_mfma_f32_16x16x16_bf16"
NSLOT = 9
WRING = NSLOT * 3072
HB = 4 * WRING
XB = HB + 18432
SB = XB + 18432
STX = SB + 12288
LDS1 = STX + 1536
sX, sWQ, sWO, sWS = 4, 8, 12, 16
sW, sWB, sN0, sT = 20, 21, 22, 23
sTMP = 24
sMASK = 40
sDBG = 48
vL, vI, vG = 250, 251, 252
vWq = [240, 241, 242]; vWo = [243, 244, 245]
vTR, vTOA, vTOB = 246, 247, 248
vH = 249
aH = lambda T, ks: (T * 6 + ks) * 4
aWF = lambda buf, nt: 72 + buf * 12 + nt * 4

def gen_k1(stamps=False, X=None):
    X = X or {}
    E = Emitter("k1"); e = E.e
    nstamp = [0]; gen_k1.stamp_names = []
    def stamp(name, fine=None):
        if not stamps: return
        if fine is not None and X.get('fine') != fine: return
        if X.get('fine') and fine is None and name not in ('entry', 'end') and name not in X.get('keep', ()): return
        k = nstamp[0]; nstamp[0] += 1
        e(f"s_memtime s[{50+2*k}:{51+2*k}]"); gen_k1.stamp_names.append(name)
    E.raw(".globl k1_kernel\n.p2align 8\n.type k1_kernel,@function\nk1_kernel:")
    e("s_cmp_ge_u32 s2, 252"); e("s_cbranch_scc1 K1_EXIT")
    stamp("entry")
    if stamps: e("s_memrealtime s[96:97]")
    e("s_cmp_ge_u32 s2, 216"); e("s_cbranch_scc1 K1_SIDE")
    main_snap = None
    e(f"s_load_dwordx2 s[{sX}:{sX+1}], s[0:1], 0")
    e(f"s_load_dwordx2 s[{sWQ}:{sWQ+1}], s[0:1], 8")
    e(f"s_load_dwordx2 s[{sWO}:{sWO+1}], s[0:1], 16")
    e(f"s_load_dwordx2 s[{sWS}:{sWS+1}], s[0:1], 56")
    t0, t1, t2, t3 = 230, 231, 232, 233
    e(f"v_lshrrev_b32 v{t0}, 6, v0")
    e(f"v_and_b32 v{vL}, 63, v0")
    e(f"v_readfirstlane_b32 s{sW}, v{t0}")
    e(f"v_and_b32 v{vI}, 15, v{vL}")
    e(f"v_lshrrev_b32 v{vG}, 4, v{vL}")
    e(f"v_lshlrev_b32 v{vH}, 4, v{vL}")
    if X.get('pfc', 1):
        e("s_getpc_b64 s[88:89]")
        E.label("K1_PC")
        e("s_sub_u32 s88, s88, K1_PC-k1_kernel"); e("s_subb_u32 s89, s89, 0")
        e("s_and_b32 s89, s89, 0xffff"); e("s_mov_b32 s90, K1_CODE_END-k1_kernel"); e("s_mov_b32 s91, 0x20000")
        e(f"s_lshr_b32 s38, s2, 3"); e(f"s_lshl_b32 s38, s38, 2"); e(f"s_add_u32 s38, s38, s{sW}"); e(f"s_lshl_b32 s38, s38, 1")
        e(f"v_and_b32 v{t1}, 1, v{vL}"); e(f"v_add_u32 v{t1}, s38, v{t1}"); e(f"v_lshlrev_b32 v{t1}, 7, v{t1}")
        e(f"buffer_load_dword a251, v{t1}, s[88:91], 0 offen")
    e(f"s_mul_i32 s{sN0}, s2, 6")
    e(f"s_min_u32 s{sT}, s{sW}, 2")
    e(f"s_mul_i32 s{sWB}, s{sW}, {WRING}")
    vX = 234; X0 = 180
    e(f"v_and_b32 v{t0}, 7, v{vI}")
    e(f"s_mov_b32 s24, {XFS}")
    e(f"v_mul_lo_u32 v{t0}, v{t0}, s24")
    e(f"v_lshrrev_b32 v{t1}, 3, v{vI}")
    e(f"v_mul_u32_u24 v{t1}, 384, v{t1}")
    e(f"v_lshl_add_u32 v{t1}, v{vG}, 4, v{t1}")
    e(f"v_add_u32 v{vX}, v{t0}, v{t1}")
    e(f"s_lshl_b32 s37, s{sT}, 1"); e(f"s_add_u32 s37, s37, s{sN0}"); e(f"s_mul_i32 s37, s37, 384")
    E.waitfor(rd=[f"s[{sX}:{sX+1}]"])
    stamp("karg", 'front')
    def mksrd(b_, n):
        e(f"s_and_b32 s{b_+1}, s{b_+1}, 0xffff"); e(f"s_mov_b32 s{b_+2}, {n}"); e(f"s_mov_b32 s{b_+3}, 0x20000")
    srdX, srdWQ, srdWO, srdWS = (f"s[{b_}:{b_+3}]" for b_ in (sX, sWQ, sWO, sWS))
    mksrd(sX, T * XFS); mksrd(sWQ, 221184); mksrd(sWO, 73728); mksrd(sWS, WS_END)
    ADDR = []
    real_e = e
    e = lambda txt, **kw: ADDR.append((txt, kw))
    e(f"s_mov_b32 s26, 0x2aaaaaab")
    e(f"s_mul_i32 s27, s{sW}, 96")
    for k in range(3):
        e(f"v_add_u32 v{t0}, {64*k}, v{vL}")
        e(f"v_mul_hi_u32 v{t1}, v{t0}, s26")
        e(f"v_mul_u32_u24 v{t2}, 6, v{t1}")
        e(f"v_sub_u32 v{t2}, v{t0}, v{t2}")
        e(f"v_lshlrev_b32 v{t2}, 4, v{t2}")
        e(f"v_add_u32 v{t2}, s27, v{t2}")
        if k: e(f"v_subrev_u32 v{t2}, {1024*k}, v{t2}")
        e(f"v_mul_u32_u24 v{t3}, 384, v{t1}")
        e(f"v_add_u32 v{vWo[k]}, v{t3}, v{t2}")
        e(f"v_and_b32 v{t0}, 0x13, v{t1}")
        e(f"v_and_b32 v{t3}, 4, v{t1}")
        e(f"v_lshl_or_b32 v{t0}, v{t3}, 1, v{t0}")
        e(f"v_and_b32 v{t3}, 8, v{t1}")
        e(f"v_lshrrev_b32 v{t3}, 1, v{t3}")
        e(f"v_or_b32 v{t0}, v{t0}, v{t3}")
        e(f"v_mul_u32_u24 v{t0}, 1152, v{t0}")
        e(f"v_add_u32 v{vWq[k]}, v{t0}, v{t2}")
    nwaddr = len(ADDR)
    def slab_items(s):
        M, ks = s // 6, s % 6; slot = s % NSLOT
        def setup():
            e(f"s_add_u32 m0, s{sWB}, {slot*3072}")
            e(f"s_mov_b32 s28, {ks*32*1152 + M*384 if M < 3 else ks*32*384}")
        def d(k):
            if M < 3: return lambda: e(f"buffer_load_dwordx4 v{vWq[k]}, {srdWQ}, s28 offen offset:{k*1024} lds", wr=[f"L:r{slot}"])
            return lambda: e(f"buffer_load_dwordx4 v{vWo[k]}, {srdWO}, s28 offen offset:{k*1024} lds", wr=[f"L:r{slot}"])
        return [setup, d(0), d(1), d(2)]
    def slab_dma(s):
        for f in slab_items(s): f()
    e(f"v_lshrrev_b32 v{t0}, 1, v{vG}"); e(f"v_lshlrev_b32 v{t0}, 4, v{t0}")
    e(f"v_and_b32 v{t1}, 1, v{vG}"); e(f"v_lshl_add_u32 v{t0}, v{t1}, 2, v{t0}")
    e(f"v_lshrrev_b32 v{t1}, 2, v{vI}"); e(f"v_add_u32 v{t0}, v{t0}, v{t1}")
    e(f"v_mul_u32_u24 v{t0}, 96, v{t0}")
    e(f"v_and_b32 v{t2}, 3, v{vI}")
    e(f"v_lshl_add_u32 v{t0}, v{t2}, 3, v{t0}")
    e(f"v_add_u32 v{vTR}, s{sWB}, v{t0}")
    e(f"v_lshl_add_u32 v{t0}, v{vG}, 2, v{t1}")
    e(f"v_mul_u32_u24 v{t0}, 96, v{t0}")
    e(f"v_add_u32 v{t0}, s{sWB}, v{t0}")
    e(f"v_lshl_add_u32 v{vTOA}, v{t2}, 4, v{t0}")
    e(f"v_lshl_add_u32 v{vTOB}, v{t2}, 3, v{t0}")
    e(f"v_add_u32 v{vTOB}, 64, v{vTOB}")
    e(f"v_lshrrev_b32 v{t0}, 1, v{vG}"); e(f"v_lshrrev_b32 v{t1}, 3, v{vI}")
    e(f"v_cmp_eq_u32 s[{sMASK}:{sMASK+1}], v{t0}, v{t1}")
    vXR4, vXR2 = 228, 229
    c4, c2 = 226, 227
    e(f"s_mul_i32 s24, s{sW}, 6")
    e(f"v_add_u32 v{c4}, s24, v{vG}")
    def xaddr(dst, c16):
        e(f"v_lshrrev_b32 v{t2}, 2, v{c16}"); e(f"v_lshlrev_b32 v{t2}, 10, v{t2}")
        e(f"v_and_b32 v{t3}, 3, v{c16}"); e(f"v_lshl_add_u32 v{t3}, v{t3}, 4, v{vI}")
        e(f"v_lshl_add_u32 v{dst}, v{t3}, 4, v{t2}"); e(f"v_add_u32 v{dst}, {XB}, v{dst}")
    xaddr(vXR4, c4)
    e(f"v_lshrrev_b32 v{t1}, 1, v{vG}"); e(f"s_add_u32 s24, s24, 4"); e(f"v_add_u32 v{c2}, s24, v{t1}")
    xaddr(vXR2, c2)
    e(f"v_and_b32 v{t2}, 1, v{vG}"); e(f"v_lshl_add_u32 v{vXR2}, v{t2}, 3, v{vXR2}")
    FSTR = 2320
    LATE = []
    real2 = e
    e = lambda txt, **kw: LATE.append(txt)
    vA4 = lambda Tt: 212 + Tt; vA2 = lambda Tt: 215 + Tt; vAS = 218
    u0, u1, u2, u3, u4 = 144, 145, 146, 147, 148
    e(f"v_and_b32 v{u0}, 7, v{vI}"); e(f"v_lshrrev_b32 v{u1}, 3, v{vI}")
    e(f"v_mul_u32_u24 v{u2}, {FSTR}, v{u0}"); e(f"v_lshl_add_u32 v{u2}, v{u1}, 7, v{u2}")
    e(f"v_add_u32 v{u1}, s{sN0}, v{u1}")
    e(f"v_mul_u32_u24 v{u0}, {N*8 // 8}, v{u0}"); e(f"v_add_u32 v{vAS}, v{u0}, v{u1}"); e(f"v_lshlrev_b32 v{vAS}, 3, v{vAS}")
    e(f"v_lshrrev_b32 v{u3}, 3, v{c4}"); e(f"v_mul_u32_u24 v{u3}, 768, v{u3}"); e(f"v_add3_u32 v{u3}, v{u3}, v{u2}, s33")
    e(f"v_lshrrev_b32 v{u4}, 3, v{c2}"); e(f"v_mul_u32_u24 v{u4}, 768, v{u4}"); e(f"v_add3_u32 v{u4}, v{u4}, v{u2}, s33")
    e(f"v_and_b32 v{u0}, 1, v{vG}"); e(f"v_lshl_add_u32 v{u4}, v{u0}, 3, v{u4}")
    e(f"v_and_b32 v{c4}, 7, v{c4}"); e(f"v_and_b32 v{c2}, 7, v{c2}")
    for Tt in range(3):
        if Tt: e(f"v_add_u32 v{u1}, 2, v{u1}")
        e(f"v_and_b32 v{u0}, 6, v{u1}")
        e(f"v_xor_b32 v{u2}, v{c4}, v{u0}"); e(f"v_lshl_add_u32 v{vA4(Tt)}, v{u2}, 4, v{u3}")
        e(f"v_xor_b32 v{u2}, v{c2}, v{u0}"); e(f"v_lshl_add_u32 v{vA2(Tt)}, v{u2}, 4, v{u4}")
    vOL, vOG = 219, 220
    e(f"v_lshrrev_b32 v{u0}, 3, v{vL}"); e(f"v_and_b32 v{u1}, 7, v{vL}"); e(f"v_lshlrev_b32 v{u1}, 4, v{u1}")
    e(f"v_min_u32 v{u2}, 5, v{u0}"); e(f"v_lshl_add_u32 v{vOL}, v{u2}, 7, v{u1}"); e(f"v_add_u32 v{vOL}, s34, v{vOL}")
    e(f"v_add_u32 v{u2}, s{sN0}, v{u2}")
    e(f"v_lshrrev_b32 v{u3}, 5, v{u2}"); e(f"v_mul_u32_u24 v{u3}, {CH}, v{u3}")
    e(f"v_and_b32 v{u2}, 31, v{u2}"); e(f"v_lshl_add_u32 v{u2}, v{u2}, 7, v{u3}"); e(f"v_add_u32 v{vOG}, v{u2}, v{u1}")
    e(f"v_cmp_lt_u32 vcc, 5, v{u0}"); e(f"v_mov_b32 v{u2}, 0x7ffffff0"); e(f"v_cndmask_b32 v{vOG}, v{vOG}, v{u2}, vcc")
    e = real2
    e(f"s_mov_b32 s33, {XB}")
    e(f"s_mul_i32 s34, s{sW}, {2*FSTR}"); e(f"s_add_u32 s34, s34, {XB}")
    e(f"s_mul_i32 s42, s{sW}, {2*FS}")
    for k in range(1, 6): e(f"s_add_u32 s{42+k}, s42, {(k//3)*FS + (k%3)*4096}")
    vHB, vSW, vSR, vOW, vS1, vS2, vSTR = 235, 236, 237, [238, 239, 253], 221, 222, 223
    vPWr, vPRd = 210, 211
    e(f"v_add_u32 v{vHB}, {HB}, v{vH}")
    e(f"s_mul_i32 s24, s{sW}, 3072"); e(f"s_add_u32 s24, s24, {SB}")
    e(f"v_add_u32 v{vSW}, s24, v{vH}")
    e(f"s_lshl_b32 s24, s{sT}, 10"); e(f"s_add_u32 s24, s24, {SB}"); e(f"v_add_u32 v{vSR}, s24, v{vH}")
    e(f"v_lshlrev_b32 v{vPRd}, 3, v{vL}"); e(f"v_add_u32 v{vPRd}, {STX}, v{vPRd}")
    e(f"s_lshl_b32 s24, s{sT}, 9"); e(f"v_add_u32 v{vPWr}, s24, v{vPRd}")
    for nt in range(3):
        e(f"s_mul_i32 s24, s{sW}, 3"); e(f"s_add_u32 s24, s24, {nt}")
        e(f"s_lshr_b32 s25, s24, 1"); e(f"s_lshl_b32 s25, s25, 10"); e(f"s_and_b32 s24, s24, 1"); e(f"s_lshl_b32 s24, s24, 3")
        e(f"s_add_u32 s24, s24, s25"); e(f"s_add_u32 s24, s24, {HB}")
        e(f"v_add_u32 v{vOW[nt]}, s24, v{vH}")
    e(f"v_lshlrev_b32 v{vSTR}, 4, v{vI}"); e(f"v_add_u32 v{vSTR}, {STX}, v{vSTR}")
    e(f"s_lshl_b32 s24, s{sW}, 2")
    e(f"v_lshl_add_u32 v{vS1}, v{vG}, 8, v{vSTR}"); e(f"v_add_u32 v{vS1}, s24, v{vS1}")
    e(f"v_and_b32 v{t0}, 1, v{vG}"); e(f"v_lshl_add_u32 v{vS2}, v{t0}, 8, v{vSTR}"); e(f"v_add_u32 v{vS2}, s24, v{vS2}")
    e(f"v_add_u32 v{vS2}, 1024, v{vS2}")
    e(f"s_mul_i32 s24, s{sT}, 6144")
    e(f"s_add_u32 s25, s24, {HB}"); e(f"s_add_u32 s24, s24, {XB}")
    e(f"s_cmp_eq_u32 s{sW}, 3"); e(f"s_cselect_b32 s24, {SB}, s24")
    vHW, vXW = 224, 225
    e(f"v_add_u32 v{vHW}, s25, v{vH}"); e(f"v_add_u32 v{vXW}, s24, v{vH}")
    import struct
    cs = struct.unpack("<I", struct.pack("<f", SCALE_LOG2E))[0]
    e(f"s_mov_b32 s29, {hex(cs)}"); e(f"s_mov_b32 s36, 0x3baaaaab")
    ONE = 76
    e(f"v_mov_b32 v{ONE}, 0x3f803f80")
    for k in range(1, 4): e(f"v_mov_b32 v{ONE+k}, v{ONE}")
    e("v_mov_b32 v80, 0"); e("v_mov_b32 v81, 0")
    e = real_e
    pend = []
    def pump(n=1):
        for _ in range(n):
            if not pend: return
            f = pend.pop(0); f()
            if f.__name__ == "setup" and pend: pend.pop(0)()
    e(f"s_cmp_eq_u32 s{sW}, 3"); e("s_cbranch_scc1 K1_LOADER")
    snap0 = E.snapshot()
    for ks in range(6):
        e(f"buffer_load_dwordx4 {vr(X0+4*ks,4)}, v{vX}, {srdX}, s25x offen offset:{ks*64}".replace("s25x", "s37"))
    stamp("xiss")
    for (txt, kw) in ADDR[:nwaddr]: e(txt, **kw)
    npre = X.get('npre', 2)
    nln = X.get('nln', 4)
    for s_ in range(npre): slab_dma(s_)
    stamp("iss1")
    for (txt, kw) in ADDR[nwaddr:]: e(txt, **kw)
    for s_ in range(npre, nln): pend.extend(slab_items(s_))
    stamp("addr")
    F = lambda k: 24 + k
    SU, SQ, TM = 72, 80, 82
    E.waitfor(rd=[vr(X0, 4)])
    stamp("xin")
    for ks in range(6):
        e(f"{MF} {vr(SU,4)}, {vr(ONE,4)}, {vr(X0+4*ks,4)}, {'0' if ks == 0 else vr(SU,4)}")
        for r in range(4):
            reg = X0 + 4 * ks + r
            e(f"v_dot2c_f32_bf16 v{SQ+(r&1)}, v{reg}, v{reg}")
    ln = []
    L_ = lambda txt: ln.append(txt)
    L_(f"v_add_f32 v{SQ}, v{SQ}, v{SQ+1}")
    for r in range(4): L_(f"v_lshlrev_b32 v{F(2*r)}, 16, v{X0+r}");
    L_(f"v_mov_b32 v{TM}, v{SQ}");
    for r in range(4): L_(f"v_and_b32 v{F(2*r+1)}, 0xffff0000, v{X0+r}")
    L_(f"v_permlane16_swap_b32 v{SQ}, v{TM}"); L_(f"v_add_f32 v{SQ}, v{SQ}, v{TM}")
    L_(f"v_mul_f32 v{SU}, 0x3baaaaab, v{SU}")
    L_(f"v_mov_b32 v{TM}, v{SQ}")
    L_(f"v_lshlrev_b32 v{F(8)}, 16, v{X0+4}"); L_(f"v_and_b32 v{F(9)}, 0xffff0000, v{X0+4}")
    L_(f"v_permlane32_swap_b32 v{SQ}, v{TM}"); L_(f"v_add_f32 v{SQ}, v{SQ}, v{TM}")
    L_(f"v_mul_f32 v{TM}, v{SU}, v{SU}")
    L_(f"v_fma_f32 v{SQ}, v{SQ}, s36, -v{TM}")
    L_(f"v_max_f32 v{SQ}, 0, v{SQ}"); L_(f"v_add_f32 v{SQ}, 0x3727c5ac, v{SQ}")
    L_(f"v_rsq_f32 v{SQ}, v{SQ}")
    for r in range(5, 8):
        L_(f"v_lshlrev_b32 v{F(2*r)}, 16, v{X0+r}"); L_(f"v_and_b32 v{F(2*r+1)}, 0xffff0000, v{X0+r}")
    L_(f"v_mul_f32 v{TM}, v{SU}, v{SQ}"); L_(f"v_sub_f32 v{TM}, 0, v{TM}")
    HP = 84
    for r in range(24):
        if r >= 8: L_(f"v_lshlrev_b32 v{F(2*r)}, 16, v{X0+r}"); L_(f"v_and_b32 v{F(2*r+1)}, 0xffff0000, v{X0+r}")
        L_(f"v_pk_fma_f32 {vr(F(2*r),2)}, {vr(F(2*r),2)}, {vr(SQ,2)}, {vr(TM,2)} op_sel_hi:[1,0,0]")
        L_(f"v_cvt_pk_bf16_f32 v{HP+r}, v{F(2*r)}, v{F(2*r+1)}")
        if (r & 3) == 3: L_(f"ds_write_b128 v{vHW}, {vr(HP+r-3,4)} offset:{(r>>2)*1024}")
    pace = X.get('pace', 12)
    for k, txt in enumerate(ln):
        e(txt)
        if (k + 1) % pace == 0: pump()
    while pend: pump()
    stamp("lnend", 'ln')
    E.wait(lgkm=0)
    e("s_branch K1_JOIN")
    snapA = E.snapshot()
    E.label("K1_LOADER"); E.restore(snap0)
    vQ1, vQ2 = 4, 5
    e(f"s_lshr_b32 s38, s2, 3")
    def wpf():
        if X.get('pf', 1):
            e(f"s_mul_i32 s39, s38, 86")
            e(f"v_add_u32 v{vQ1}, s39, v{vL}"); e(f"v_lshlrev_b32 v{vQ1}, 7, v{vQ1}")
            e(f"v_min_u32 v{vQ2}, 21, v{vL}"); e(f"v_add_u32 v{vQ2}, s39, v{vQ2}"); e(f"v_add_u32 v{vQ2}, 64, v{vQ2}"); e(f"v_lshlrev_b32 v{vQ2}, 7, v{vQ2}")
            e(f"buffer_load_dword a255, v{vQ1}, {srdWQ}, 0 offen")
            e(f"buffer_load_dword a254, v{vQ2}, {srdWQ}, 0 offen")
            e(f"v_subrev_u32 v{vQ1}, 221184, v{vQ1}"); e(f"v_subrev_u32 v{vQ2}, 221184, v{vQ2}")
            e(f"buffer_load_dword a253, v{vQ1}, {srdWO}, 0 offen")
            e(f"buffer_load_dword a252, v{vQ2}, {srdWO}, 0 offen")
    if X.get('pffirst', 0): wpf()
    if X.get('fine') == 'pf':
        stamp("pf_iss", 'pf'); E.wait(vm=3); stamp("pf_c", 'pf'); E.wait(vm=2); stamp("pf_1", 'pf'); E.wait(vm=0); stamp("pf_all", 'pf'); E.wait(lgkm=0)
    for (txt, kw) in ADDR[:nwaddr]: e(txt, **kw)
    for s_ in range(2): slab_dma(s_)
    if not X.get('pffirst', 0): wpf()
    slab_dma(2)
    for (txt, kw) in ADDR[nwaddr:]: e(txt, **kw)
    stamp("l_addr", 'ln')
    for s_ in range(3, nln): slab_dma(s_)
    stamp("l_done", 'ln')
    if E.lg: E.wait(lgkm=0)
    snapB = E.snapshot()
    def dmaonly(sn):
        vm = [x for x in sn[0] if any(r.startswith("L:r") for r in x[0])]
        return (vm,) + tuple(sn[1:])
    snapA, snapB = dmaonly(snapA), dmaonly(snapB)
    n_ = min(len(snapA[0]), len(snapB[0]))
    snapA = (snapA[0][-n_:],) + snapA[1:]; snapB = (snapB[0][-n_:],) + snapB[1:]
    E.merge([snapA, snapB])
    E.label("K1_JOIN")
    e("s_barrier")
    stamp("ln1")
    for s_ in range(nln, NSLOT): pend.extend(slab_items(s_))
    def slab_reads(s, buf):
        M = s // 6; slot = s % NSLOT; out = []
        for nt in range(3):
            for hh in range(2):
                if M < 3: adr, off = vTR, slot*3072 + hh*768 + nt*32
                elif nt < 2: adr, off = vTOA, slot*3072 + hh*1536 + nt*8
                else: adr, off = vTOB, slot*3072 + hh*1536
                out.append(lambda adr=adr, off=off, nt=nt, hh=hh: e(f"ds_read_b64_tr_b16 {ar(aWF(buf,nt)+2*hh,2)}, v{adr} offset:{off}", rd=[f"L:r{slot}"]))
        return out
    QA = lambda nt, Tt: (nt * 3 + Tt) * 4
    KA = lambda nt, Tt: 36 + (nt * 3 + Tt) * 4
    VA = lambda Tt, nt: 72 + (Tt * 3 + nt) * 4
    YA = lambda nt, Tt: 108 + (Tt * 3 + nt) * 4
    hread = lambda Tt, ks: (lambda: e(f"ds_read_b128 {ar(aH(Tt,ks),4)}, v{vHB} offset:{(Tt*6+ks)*1024}"))
    def gemm(M, valu=None, mem=None, cinit=False, stream_b=False):
        valu = list(valu or []); mem = list(mem or [])
        for ks in range(6):
            s = M * 6 + ks; buf = s & 1
            nxt = slab_reads(s + 1, (s + 1) & 1) if s + 1 < 24 else []
            if s + NSLOT - 1 < 24 and s >= 1: pend.extend(slab_items(s + NSLOT - 1))
            hb = [hread(Tt, ks + 1) for Tt in range(3)] if (stream_b and ks < 5) else []
            k = 0
            for nt in range(3):
                for Tt in range(3):
                    W = ar(aWF(buf, nt), 4)
                    if M == 0: d, a, b = vr(QA(nt, Tt), 4), W, ar(aH(Tt, ks), 4)
                    elif M == 1: d, a, b = vr(KA(nt, Tt), 4), W, ar(aH(Tt, ks), 4)
                    elif M == 2: d, a, b = vr(VA(Tt, nt), 4), ar(aH(Tt, ks), 4), W
                    else: d, a, b = vr(YA(nt, Tt), 4), W, ar(aH(Tt, ks), 4)
                    e(f"{MF} {d}, {a}, {b}, {'0' if (ks == 0 and not cinit) else d}")
                    if k == 2: E.waitfor(rd=[ar(aWF(buf, 1), 4)])
                    if k == 5: E.waitfor(rd=[ar(aWF(buf, 2), 4)])
                    if k == 8 and nxt:
                        rr = [ar(aWF((s + 1) & 1, 0), 4)]
                        if hb: rr += [ar(aH(0, ks + 1), 4), ar(aH(1, ks + 1), 4)]
                        E.waitfor(rd=rr)
                    room = 2
                    if k < 6 and nxt: nxt[k](); room -= 1
                    if k in (0, 2, 4) and hb: hb[k // 2](); room -= 1
                    if pend and (k >= 6 or (len(pend) > 4 and k in (1, 3, 5) and room > 0)): pump(); room -= 1
                    if room > 0 and mem and k >= 6: mem.pop(0)(); room -= 1
                    while room > 0 and valu:
                        f = valu[0]; c = getattr(f, "cost", 1)
                        if c > room and room < 2: break
                        valu.pop(0)(); room -= c
                    k += 1
        for f in mem: f()
        for f in valu: f()
    V_ = lambda lst, txt, cost=1: lst.append(_mk(txt, cost))
    def _mk(txt, cost):
        f = lambda: e(txt)
        f.cost = cost
        return f
    for f in slab_reads(0, 0)[:2]: f()
    for Tt in range(3): hread(Tt, 0)()
    for f in slab_reads(0, 0)[2:]: f()
    xw = [(lambda ks=ks: e(f"ds_write_b128 v{vXW}, {vr(X0+4*ks,4)} offset:{ks*1024}")) for ks in range(6)]
    gemm(0, mem=xw, stream_b=True)
    while pend: pump()
    E.wait(lgkm=0)
    e("s_barrier")
    stamp("q")
    XR = lambda Tt: 144 + 6 * Tt
    for Tt in range(3):
        e(f"ds_read_b128 {vr(XR(Tt),4)}, v{vXR4} offset:{Tt*6144}")
        e(f"ds_read_b64 {vr(XR(Tt)+4,2)}, v{vXR2} offset:{Tt*6144}")
    fill = []
    for Tt in range(3):
        for nt in range(3):
            a = QA(nt, Tt)
            V_(fill, f"v_cvt_pk_bf16_f32 v{a}, v{a}, v{a+1}"); V_(fill, f"v_cvt_pk_bf16_f32 v{a+1}, v{a+2}, v{a+3}")
    for Tt in range(3):
        for j in range(12):
            raw = XR(Tt) + (j >> 1); d = YA(0, Tt) + j
            if j & 1: V_(fill, f"v_and_b32 v{d}, 0xffff0000, v{raw}")
            else: V_(fill, f"v_lshlrev_b32 v{d}, 16, v{raw}")
    gemm(1, valu=fill); stamp("k")
    SP = lambda Tt: 144 + 4 * Tt
    for nt in range(3):
        for Tt in range(3):
            a = KA(nt, Tt)
            e(f"v_cvt_pk_bf16_f32 v{a}, v{a}, v{a+1}"); e(f"v_cvt_pk_bf16_f32 v{a+1}, v{a+2}, v{a+3}")
        for Tt in range(3):
            e(f"{MF16} {vr(SP(Tt),4)}, {vr(KA(nt,Tt),2)}, {vr(QA(nt,Tt),2)}, {'0' if nt == 0 else vr(SP(Tt),4)}")
    for Tt in range(3): e(f"ds_write_b128 v{vSW}, {vr(SP(Tt),4)} offset:{Tt*1024}")
    E.wait(lgkm=0)
    e("s_barrier")
    stamp("spart")
    SR = lambda src: 172 + 4 * src
    for src in range(4): e(f"ds_read_b128 {vr(SR(src),4)}, v{vSR} offset:{src*3072}")
    fill = []
    s0 = SR(0); m = 188; tm = 189; PPW = 190
    for r in range(4):
        V_(fill, f"v_add_f32 v{s0+r}, v{s0+r}, v{SR(1)+r}")
        V_(fill, f"v_add_f32 v{SR(2)+r}, v{SR(2)+r}, v{SR(3)+r}")
    for r in range(4): V_(fill, f"v_add_f32 v{s0+r}, v{s0+r}, v{SR(2)+r}")
    V_(fill, f"v_max3_f32 v{m}, v{s0}, v{s0+1}, v{s0+2}"); V_(fill, f"v_max_f32 v{m}, v{m}, v{s0+3}")
    V_(fill, f"v_mov_b32 v{tm}, v{m}"); V_(fill, f"v_permlane16_swap_b32 v{m}, v{tm}", 2); V_(fill, f"v_max_f32 v{m}, v{m}, v{tm}")
    V_(fill, f"v_mul_f32 v{m}, s29, v{m}")
    for r in range(4): V_(fill, f"v_fma_f32 v{s0+r}, v{s0+r}, s29, -v{m}")
    for r in range(4): V_(fill, f"v_exp_f32 v{s0+r}, v{s0+r}", 2)
    V_(fill, f"v_add_f32 v{m}, v{s0}, v{s0+1}"); V_(fill, f"v_add_f32 v{tm}, v{s0+2}, v{s0+3}"); V_(fill, f"v_add_f32 v{m}, v{m}, v{tm}")
    V_(fill, f"v_mov_b32 v{tm}, v{m}"); V_(fill, f"v_permlane16_swap_b32 v{m}, v{tm}", 2); V_(fill, f"v_add_f32 v{m}, v{m}, v{tm}")
    V_(fill, f"v_rcp_f32 v{m}, v{m}", 2)
    for r in range(4): V_(fill, f"v_mul_f32 v{s0+r}, v{s0+r}, v{m}")
    V_(fill, f"v_cvt_pk_bf16_f32 v{PPW}, v{s0}, v{s0+1}"); V_(fill, f"v_cvt_pk_bf16_f32 v{PPW+1}, v{s0+2}, v{s0+3}")
    V_(fill, f"v_cndmask_b32 v{PPW}, 0, v{PPW}, s[{sMASK}:{sMASK+1}]"); V_(fill, f"v_cndmask_b32 v{PPW+1}, 0, v{PPW+1}, s[{sMASK}:{sMASK+1}]")
    V_(fill, f"ds_write_b64 v{vPWr}, {vr(PPW,2)}")
    fill = [f for f in fill if True]
    gemm(2, valu=fill)
    E.wait(lgkm=0)
    e("s_barrier")
    stamp("v")
    PP = lambda Tt: 204 + 2 * Tt
    for Tt in range(3): e(f"ds_read_b64 {vr(PP(Tt),2)}, v{vPRd} offset:{Tt*512}")
    OA = lambda Tt, nt: (Tt * 3 + nt) * 4
    for Tt in range(3):
        for nt in range(3):
            a = VA(Tt, nt)
            e(f"v_cvt_pk_bf16_f32 v{a}, v{a}, v{a+1}"); e(f"v_cvt_pk_bf16_f32 v{a+1}, v{a+2}, v{a+3}")
    for Tt in range(3):
        for nt in range(3):
            e(f"{MF16} {vr(OA(Tt,nt),4)}, {vr(VA(Tt,nt),2)}, {vr(PP(Tt),2)}, 0")
    for Tt in range(3):
        for nt in range(3):
            a = OA(Tt, nt)
            e(f"v_cvt_pk_bf16_f32 v{a}, v{a}, v{a+1}"); e(f"v_cvt_pk_bf16_f32 v{a+1}, v{a+2}, v{a+3}")
            e(f"ds_write_b64 v{vOW[nt]}, {vr(a,2)} offset:{Tt*6144}")
    E.wait(lgkm=0)
    e("s_barrier")
    stamp("o")
    for Tt in range(3): hread(Tt, 0)()
    gemm(3, valu=[_mk(t_, 1) for t_ in LATE], cinit=True, stream_b=True); stamp("y")
    SV = [4, 5, 6, 7, 8, 9]
    for Tt in range(3):
        y = YA(0, Tt); a_, b_ = 10 + 4 * Tt, 12 + 4 * Tt
        e(f"v_pk_add_f32 {vr(a_,2)}, {vr(y,2)}, {vr(y+2,2)}")
        e(f"v_pk_mul_f32 {vr(b_,2)}, {vr(y,2)}, {vr(y,2)}")
        e(f"v_pk_fma_f32 {vr(b_,2)}, {vr(y+2,2)}, {vr(y+2,2)}, {vr(b_,2)}")
        for j in range(4, 12, 2):
            e(f"v_pk_add_f32 {vr(a_,2)}, {vr(a_,2)}, {vr(y+j,2)}")
            e(f"v_pk_fma_f32 {vr(b_,2)}, {vr(y+j,2)}, {vr(y+j,2)}, {vr(b_,2)}")
    for Tt in range(3):
        a_, b_ = 10 + 4 * Tt, 12 + 4 * Tt
        e(f"v_add_f32 v{SV[2*Tt]}, v{a_}, v{a_+1}"); e(f"v_add_f32 v{SV[2*Tt+1]}, v{b_}, v{b_+1}")
    A0, B0, C0, D0, E0, F0 = SV
    e(f"v_permlane16_swap_b32 v{A0}, v{B0}"); e(f"v_permlane16_swap_b32 v{C0}, v{D0}"); e(f"v_permlane16_swap_b32 v{E0}, v{F0}")
    e(f"v_add_f32 v{A0}, v{A0}, v{B0}"); e(f"v_add_f32 v{C0}, v{C0}, v{D0}"); e(f"v_add_f32 v{E0}, v{E0}, v{F0}")
    e(f"v_mov_b32 v{F0}, v{E0}")
    e(f"v_permlane32_swap_b32 v{A0}, v{C0}"); e(f"v_permlane32_swap_b32 v{E0}, v{F0}")
    e(f"v_add_f32 v{A0}, v{A0}, v{C0}"); e(f"v_add_f32 v{E0}, v{E0}, v{F0}")
    e(f"ds_write_b32 v{vS1}, v{A0}"); e(f"ds_write_b32 v{vS2}, v{E0}")
    e(f"v_cmp_eq_u32 vcc, 0, v{vG}")
    e(f"s_mov_b64 s[40:41], vcc")
    E.wait(lgkm=0)
    e("s_barrier")
    stamp("stat")
    ST = lambda Tt, w: 0 + (Tt * 4 + w) * 2
    RD = lambda v: 24 + 4 * v
    for v in range(6): e(f"ds_read_b128 {vr(RD(v),4)}, v{vSTR} offset:{v*256}")
    for v in range(6):
        r = RD(v); e(f"v_pk_add_f32 {vr(r,2)}, {vr(r,2)}, {vr(r+2,2)}")
    for v in range(6):
        r = RD(v); e(f"v_add_f32 v{r}, v{r}, v{r+1}")
    for Tt in range(3): e(f"v_mul_f32 v{ST(Tt,0)}, 0x3baaaaab, v{RD(2*Tt)}")
    for Tt in range(3): e(f"v_mul_f32 v{ST(Tt,0)+2}, v{ST(Tt,0)}, v{ST(Tt,0)}")
    for Tt in range(3): e(f"v_fma_f32 v{ST(Tt,0)+2}, v{RD(2*Tt+1)}, s36, -v{ST(Tt,0)+2}")
    for Tt in range(3): e(f"v_max_f32 v{ST(Tt,0)+2}, 0, v{ST(Tt,0)+2}")
    for Tt in range(3): e(f"v_add_f32 v{ST(Tt,0)+2}, 0x3727c5ac, v{ST(Tt,0)+2}")
    for Tt in range(3): e(f"v_rsq_f32 v{ST(Tt,0)+4}, v{ST(Tt,0)+2}")
    for Tt in range(3): e(f"v_mul_f32 v{ST(Tt,0)+6}, v{ST(Tt,0)}, v{ST(Tt,0)+4}")
    for Tt in range(3): e(f"v_mul_f32 v{ST(Tt,0)+1}, v{ST(Tt,0)+2}, v{ST(Tt,0)+4}")
    for Tt in range(3): e(f"v_sub_f32 v{ST(Tt,0)+6}, 0, v{ST(Tt,0)+6}")
    for Tt in range(3):
        a_ = ST(Tt, 0); y = YA(0, Tt)
        for j in range(0, 12, 2): e(f"v_pk_fma_f32 {vr(y+j,2)}, {vr(y+j,2)}, {vr(a_+4,2)}, {vr(a_+6,2)} op_sel_hi:[1,0,0]")
        for p in range(6): e(f"v_cvt_pk_bf16_f32 v{y+p}, v{y+2*p}, v{y+2*p+1}")
        e(f"ds_write_b128 v{vA4(Tt)}, {vr(y,4)} offset:{Tt*256}")
        e(f"ds_write_b64 v{vA2(Tt)}, {vr(y+4,2)} offset:{Tt*256}")
    E.wait(lgkm=0)
    e("s_barrier")
    stamp("norm")
    for j in range(6): e(f"ds_read_b128 {vr(36+4*j,4)}, v{vOL} offset:{(j//3)*FSTR + (j%3)*768}")
    for j in range(6): e(f"buffer_store_dwordx4 {vr(36+4*j,4)}, v{vOG}, {srdWS}, s{42+j} offen")
    e(f"s_mov_b32 s24, {WS_STAT}")
    for Tt in range(3):
        e(f"s_cmp_eq_u32 s{sW}, {Tt}"); e(f"s_cbranch_scc0 K1_ST{Tt}")
        e(f"s_mov_b64 exec, s[40:41]")
        e(f"buffer_store_dwordx2 {vr(ST(Tt,0),2)}, v{vAS}, {srdWS}, s24 offen offset:{Tt*16}")
        e(f"s_mov_b64 exec, -1")
        E.label(f"K1_ST{Tt}")
    def dump_stamps():
        stamp("end")
        e("s_memrealtime s[98:99]")
        E.wait(lgkm=0)
        e(f"s_lshl_b32 s36, s2, 2"); e(f"s_add_u32 s36, s36, s{sW}"); e(f"s_lshl_b32 s36, s36, 7")
        e(f"s_add_u32 s36, s36, {WS_END + 0x40000}")
        e(f"s_load_dwordx2 s[92:93], s[0:1], 56"); E.wait(lgkm=0)
        e(f"s_and_b32 s93, s93, 0xffff"); e(f"s_mov_b32 s94, 0x1000000"); e(f"s_mov_b32 s95, 0x20000")
        e(f"v_mov_b32 v1, s36")
        for k in range(1, nstamp[0]):
            e(f"s_sub_u32 s36, s{50+2*k}, s50"); e(f"v_mov_b32 v0, s36")
            e(f"buffer_store_dword v0, v1, s[92:95], 0 offen offset:{4*k}")
        e(f"v_mov_b32 v0, s98")
        e(f"buffer_store_dword v0, v1, s[92:95], 0 offen offset:124")
        e(f"v_mov_b32 v0, s96")
        e(f"buffer_store_dword v0, v1, s[92:95], 0 offen offset:120")
    if stamps: dump_stamps()
    e("s_endpgm")
    E.label("K1_SIDE"); E.vm = []; E.lg = []; E.settle()
    sQS, sOS = 8, 12
    e(f"s_load_dwordx2 s[{sQS}:{sQS+1}], s[0:1], 24")
    e(f"s_load_dwordx2 s[{sOS}:{sOS+1}], s[0:1], 32")
    e(f"s_load_dwordx2 s[{sWS}:{sWS+1}], s[0:1], 56")
    e(f"v_lshrrev_b32 v{t0}, 6, v0"); e(f"v_and_b32 v{vL}, 63, v0")
    e(f"v_readfirstlane_b32 s{sW}, v{t0}")
    e(f"v_and_b32 v{vI}, 15, v{vL}"); e(f"v_lshrrev_b32 v{vG}, 4, v{vL}")
    if X.get('pfk2', 1):
        e("s_getpc_b64 s[88:89]")
        E.label("K1_PC2")
        e("s_add_u32 s88, s88, k2_kernel-K1_PC2"); e("s_addc_u32 s89, s89, 0")
        e("s_and_b32 s89, s89, 0xffff"); e("s_mov_b32 s90, K2_CODE_END-k2_kernel"); e("s_mov_b32 s91, 0x20000")
        e(f"s_sub_u32 s24, s2, 216"); e(f"s_lshr_b32 s24, s24, 3"); e(f"s_lshl_b32 s24, s24, 2"); e(f"s_add_u32 s24, s24, s{sW}")
        e(f"s_mul_i32 s24, s24, 12")
        e(f"v_min_u32 v{t1}, 11, v{vL}"); e(f"v_add_u32 v{t1}, s24, v{t1}"); e(f"v_lshlrev_b32 v{t1}, 7, v{t1}")
        e(f"buffer_load_dword a255, v{t1}, s[88:91], 0 offen")
    e(f"s_sub_u32 s24, s2, 216"); e(f"s_lshl_b32 s24, s24, 2"); e(f"s_add_u32 s24, s24, s{sW}")
    e(f"s_cmp_ge_u32 s24, 72"); e(f"s_cselect_b32 s25, 1, 0"); e(f"s_cselect_b32 s26, 72, 0"); e(f"s_sub_u32 s24, s24, s26")
    e(f"s_mul_i32 s26, s24, 3641"); e(f"s_lshr_b32 s26, s26, 16")
    e(f"s_mul_i32 s27, s26, 18"); e(f"s_sub_u32 s27, s24, s27")
    e(f"s_mul_i32 s28, s27, 21846"); e(f"s_lshr_b32 s28, s28, 16")
    e(f"s_mul_i32 s29, s28, 3"); e(f"s_sub_u32 s29, s27, s29")
    E.waitfor(rd=[f"s[{sQS}:{sQS+1}]"])
    for (b, n) in ((sQS, 221184), (sOS, 73728), (sWS, WS_END)):
        e(f"s_and_b32 s{b+1}, s{b+1}, 0xffff"); e(f"s_mov_b32 s{b+2}, {n}"); e(f"s_mov_b32 s{b+3}, 0x20000")
    srdQS, srdOS = f"s[{sQS}:{sQS+3}]", f"s[{sOS}:{sOS+3}]"
    e(f"s_lshl_b32 s30, s24, 10"); e(f"v_lshlrev_b32 v{vH}, 4, v{vL}")
    e(f"s_cmp_eq_u32 s25, 1"); e("s_cbranch_scc1 K1_SIDE_VO")
    snap = E.snapshot()
    AX = lambda js: js * 4; AY = lambda js: 24 + js * 4; BB = lambda js: 48 + js * 4
    DX, DY = 72, 76
    e(f"s_add_u32 s30, s30, {WS_WQK}")
    e(f"v_lshrrev_b32 v{t0}, 2, v{vI}"); e(f"v_and_b32 v{t1}, 3, v{vI}")
    e(f"v_lshl_add_u32 v{t0}, v{t0}, 3, v{t1}")
    e(f"s_lshl_b32 s31, s28, 5"); e(f"v_add_u32 v{t2}, s31, v{t0}")
    e(f"v_mul_u32_u24 v{t2}, 1152, v{t2}"); e(f"v_lshl_add_u32 v{t2}, v{vG}, 4, v{t2}")
    e(f"v_add_u32 v{t3}, {4*1152}, v{t2}")
    e(f"s_mul_i32 s31, s26, 3"); e(f"s_add_u32 s31, s31, s29")
    e(f"s_lshr_b32 s32, s31, 1"); e(f"s_lshl_b32 s32, s32, 5"); e(f"s_and_b32 s31, s31, 1"); e(f"s_lshl_b32 s31, s31, 2"); e(f"s_add_u32 s31, s31, s32")
    e(f"v_add_u32 v{t0}, s31, v{t0}"); e(f"v_mul_u32_u24 v{t0}, 1152, v{t0}"); e(f"v_lshl_add_u32 v{t0}, v{vG}, 4, v{t0}")
    for js in range(6):
        e(f"buffer_load_dwordx4 {vr(AX(js),4)}, v{t2}, {srdQS}, 0 offen offset:{js*64}")
        e(f"buffer_load_dwordx4 {vr(AY(js),4)}, v{t3}, {srdQS}, 0 offen offset:{js*64}")
        e(f"buffer_load_dwordx4 {vr(BB(js),4)}, v{t0}, {srdQS}, 0 offen offset:{384 + js*64}")
    for js in range(6):
        e(f"{MF} {vr(DX,4)}, {vr(AX(js),4)}, {vr(BB(js),4)}, {'0' if js == 0 else vr(DX,4)}")
        e(f"{MF} {vr(DY,4)}, {vr(AY(js),4)}, {vr(BB(js),4)}, {'0' if js == 0 else vr(DY,4)}")
    for r in range(8): e(f"v_mul_f32 v{DX+r}, {hex(cs)}, v{DX+r}")
    for p in range(4): e(f"v_cvt_pk_bf16_f32 v{DX+p}, v{DX+2*p}, v{DX+2*p+1}")
    e(f"buffer_store_dwordx4 {vr(DX,4)}, v{vH}, {srdWS}, s30 offen")
    e("s_endpgm")
    E.label("K1_SIDE_VO"); E.restore(snap)
    e(f"s_add_u32 s30, s30, {WS_WVO}")
    e(f"s_lshl_b32 s31, s28, 5"); e(f"v_add_u32 v{t2}, s31, v{vI}")
    e(f"v_mul_u32_u24 v{t2}, 1152, v{t2}"); e(f"v_lshl_add_u32 v{t2}, v{vG}, 4, v{t2}")
    e(f"v_add_u32 v{t3}, {16*1152}, v{t2}")
    e(f"v_lshrrev_b32 v{t0}, 2, v{vI}"); e(f"v_and_b32 v{t1}, 3, v{vI}")
    e(f"s_cmp_eq_u32 s29, 2"); e(f"s_cselect_b32 s31, 2, 3"); e(f"s_cselect_b32 s32, 32, 0")
    e(f"s_lshl_b32 s33, s29, 2"); e(f"s_cselect_b32 s33, s33, s33")
    e(f"s_cmp_eq_u32 s29, 2"); e(f"s_cselect_b32 s33, 0, s33")
    e(f"s_add_u32 s32, s32, s33"); e(f"s_mul_i32 s33, s26, 48"); e(f"s_add_u32 s32, s32, s33")
    e(f"v_lshlrev_b32 v{t0}, s31, v{t0}"); e(f"v_add_u32 v{t0}, v{t0}, v{t1}"); e(f"v_add_u32 v{t0}, s32, v{t0}")
    e(f"v_lshlrev_b32 v{t0}, 1, v{t0}")
    e(f"v_mul_u32_u24 v{t1}, {8*384}, v{vG}"); e(f"v_add_u32 v{t0}, v{t0}, v{t1}")
    for js in range(6):
        e(f"buffer_load_dwordx4 {vr(AX(js),4)}, v{t2}, {srdQS}, 0 offen offset:{768 + js*64}")
        e(f"buffer_load_dwordx4 {vr(AY(js),4)}, v{t3}, {srdQS}, 0 offen offset:{768 + js*64}")
    G = lambda js, s: 80 + js * 8 + s
    for js in range(6):
        e(f"s_mov_b32 s31, {js*32*384}")
        for s in range(8):
            e(f"buffer_load_ushort v{G(js,s)}, v{t0}, {srdOS}, s31 offen offset:{s*384}")
        if js == 3: E.wait(vm=20)
    for js in range(6):
        for p in range(4):
            e(f"v_lshl_or_b32 v{BB(js)+p}, v{G(js,2*p+1)}, 16, v{G(js,2*p)}")
        e(f"{MF} {vr(DX,4)}, {vr(AX(js),4)}, {vr(BB(js),4)}, {'0' if js == 0 else vr(DX,4)}")
        e(f"{MF} {vr(DY,4)}, {vr(AY(js),4)}, {vr(BB(js),4)}, {'0' if js == 0 else vr(DY,4)}")
    for p in range(4): e(f"v_cvt_pk_bf16_f32 v{DX+p}, v{DX+2*p}, v{DX+2*p+1}")
    e(f"buffer_store_dwordx4 {vr(DX,4)}, v{vH}, {srdWS}, s30 offen")
    E.label("K1_EXIT")
    e("s_endpgm")
    E.label("K1_CODE_END")
    kd = """
.section .rodata,"a"
.p2align 6
.amdhsa_kernel k1_kernel
  .amdhsa_next_free_vgpr 512
  .amdhsa_next_free_sgpr 100
  .amdhsa_accum_offset 256
  .amdhsa_group_segment_fixed_size 0
  .amdhsa_kernarg_size 64
  .amdhsa_user_sgpr_count 2
  .amdhsa_user_sgpr_kernarg_segment_ptr 1
  .amdhsa_system_sgpr_workgroup_id_x 1
  .amdhsa_float_denorm_mode_32 3
.end_amdhsa_kernel
.text
"""
    return E, kd

if __name__ == "__main__":
    import sys
    E, kd = gen_k1()
    print(E.text())
    print("; nins", E.nins, "nops", E.nops, "waits", E.waits, "lds", LDS1, file=sys.stderr)
```

```python
from asmgen import *
from layout import *

NB, DPF = 6, 4
O = lambda dt, qt: (dt * 3 + qt) * 4
S = lambda b, qt, kt: 144 + b * 24 + qt * 8 + kt * 4
NEGM = lambda qt: 192 + 4 * qt
vKE, vKO = 204, 205
vV = [206, 207, 208, 209]
vD = [210, 211, 212]
vPW = 213
RES = lambda qt: 214 + 6 * qt
STT = lambda qt: 232 + 2 * qt
SH = 238
vL, vI, vG = 242, 243, 244
vR4, vR2, vI8 = 245, 246, 247
vT0 = 248
aQ = lambda ks, qt: (ks * 3 + qt) * 4
aL = lambda qt: 72 + 4 * qt
aONE = 84
aB = lambda n: 88 + 4 * (n % NB)
aHK = lambda ks: 112 + 4 * ks
aHV = lambda dt: 136 + 2 * dt
aW = lambda ks, nt: 160 + (ks * 3 + nt) * 4
aSEL = 232
sWS = 4
sOUT = 8
sW, sT, sQB, sWB = 12, 13, 14, 15
sCH = lambda j: 16 + j
sRETRY = 26
sG = lambda qt: 27 + qt
sST = lambda qt: 30 + qt
sWVO = 33
sTMP = 36
sDBG = 48
RING = 36864
QB = 135168
HC = 153600
LX = HC + 6144
OB = 30720

class CostList(list):
    pass
class Gap:
    def __init__(self): self.pre = []; self.mem = []; self.valu = []
    def room(self):
        return 2 - len(self.mem) - sum(getattr(f, "cost", 1) for f in self.valu)
    def emit(self):
        for f in self.pre: f()
        for f in self.mem: f()
        for f in self.valu: f()

def gen_k2(stamps=False, nq=27, X=None):
    X = X or {}
    E = Emitter("k2"); e = E.e
    MF = "v_mfma_f32_16x16x32_bf16"
    MF16 = "v_mfma_f32_16x16x16_bf16"
    nstamp = [0]
    def stamp(name, fine=None):
        if not stamps: return
        if fine is not None and X.get('fine') != fine: return
        if X.get('fine') and fine is None and name not in ('entry', 'end') and name not in X.get('keep', ()): return
        k = nstamp[0]; nstamp[0] += 1
        e(f"s_memtime s[{50+2*k}:{51+2*k}]")
        gen_k2.stamp_names.append(name)
    gen_k2.stamp_names = []
    E.raw(".globl k2_kernel\n.p2align 8\n.type k2_kernel,@function\nk2_kernel:")
    e(f"s_cmp_ge_u32 s2, {8*nq}")
    e("s_cbranch_scc1 K2_EXIT")
    if stamps: e("s_memtime s[50:51]"); nstamp[0] = 1; gen_k2.stamp_names.append("entry"); e("s_memrealtime s[96:97]")
    e(f"s_load_dwordx2 s[{sWS}:{sWS+1}], s[0:1], 56")
    e(f"s_load_dwordx2 s[{sOUT}:{sOUT+1}], s[0:1], 40")
    t0, t1, t2, t3 = vT0, vT0 + 1, vT0 + 2, vT0 + 3
    e(f"v_lshrrev_b32 v{t0}, 6, v0")
    e(f"v_and_b32 v{vL}, 63, v0")
    e(f"v_readfirstlane_b32 s{sW}, v{t0}")
    e(f"v_lshlrev_b32 v{vD[0]}, 4, v{vL}")
    e(f"s_and_b32 s{sT}, s2, 7")
    e(f"s_lshr_b32 s{sQB}, s2, 3")
    e(f"v_add_u32 v{vD[1]}, 0x1000, v{vD[0]}")
    e(f"v_add_u32 v{vD[2]}, 0x2000, v{vD[0]}")
    e(f"s_mul_i32 s36, s{sT}, {FS}")
    e(f"s_mul_i32 s37, s{sQB}, 3")
    e(f"s_mul_i32 s{sWB}, s{sW}, {RING}")
    e(f"s_add_u32 s38, s37, s{sW}")
    e(f"s_cmp_eq_u32 s{sW}, 3")
    e(f"s_cselect_b32 s38, 80, s38")
    e(f"s_cselect_b32 s41, 18432, 0")
    e(f"s_add_u32 s41, s41, s{sWB}")
    e(f"s_lshr_b32 s39, s38, 1"); e(f"s_mul_i32 s39, s39, {CH}")
    e(f"s_and_b32 s38, s38, 1"); e(f"s_lshl_b32 s38, s38, 11")
    e(f"s_add_u32 s40, s39, s38"); e(f"s_add_u32 s40, s40, s36")
    e(f"s_mul_i32 s42, s{sW}, 18432")
    e(f"s_add_u32 s43, s42, {WS_WQK + 12288}")
    e(f"s_add_u32 s44, s42, {WS_WQK}")
    vPF = 144
    e(f"s_lshl_b32 s45, s{sQB}, 2"); e(f"s_add_u32 s45, s45, s{sW}")
    if X.get('pf', 1):
        e(f"s_mul_i32 s46, s45, 11")
        e(f"v_min_u32 v{vPF}, 10, v{vL}"); e(f"v_add_u32 v{vPF}, s46, v{vPF}"); e(f"v_lshlrev_b32 v{vPF}, 7, v{vPF}")
    if X.get('pfc', 1):
        e("s_getpc_b64 s[88:89]")
        E.label("K2_PC")
        e("s_sub_u32 s88, s88, K2_PC-k2_kernel"); e("s_subb_u32 s89, s89, 0")
        e("s_and_b32 s89, s89, 0xffff"); e("s_mov_b32 s90, K2_CODE_END-k2_kernel"); e("s_mov_b32 s91, 0x20000")
        e(f"s_lshl_b32 s46, s45, 1")
        e(f"v_and_b32 v{vPF+1}, 1, v{vL}"); e(f"v_add_u32 v{vPF+1}, s46, v{vPF+1}"); e(f"v_lshlrev_b32 v{vPF+1}, 7, v{vPF+1}")
    stamp("pre_karg")
    E.waitfor(rd=[f"s[{sWS}:{sWS+1}]", f"s[{sOUT}:{sOUT+1}]"])
    e(f"s_and_b32 s{sWS+1}, s{sWS+1}, 0xffff"); e(f"s_mov_b32 s{sWS+2}, {WS_END}"); e(f"s_mov_b32 s{sWS+3}, 0x20000")
    srd = f"s[{sWS}:{sWS+3}]"
    for cb in range(3):
        e(f"s_add_u32 m0, s41, {24576 + cb*2048}")
        if cb == 0: e(f"s_and_b32 s{sOUT+1}, s{sOUT+1}, 0xffff")
        elif cb == 1: e(f"s_mov_b32 s{sOUT+2}, {T*XFS}")
        else: e(f"s_mov_b32 s{sOUT+3}, 0x20000")
        for h in range(2):
            e(f"buffer_load_dwordx4 v{vD[cb]}, {srd}, s40 offen offset:{h*1024} lds", wr=["L:tile"])
    if X.get('pf', 1):
        e(f"s_mov_b32 s35, {WS_WQK}")
        e(f"buffer_load_dword a255, v{vPF}, {srd}, s35 offen")
    if X.get('pfc', 1):
        e(f"buffer_load_dword a254, v{vPF+1}, s[88:91], 0 offen")
    def wqk_load(p):
        ct_, ks_ = p // 6, p % 6; q = ks_ * 3 + ct_
        so, q = (44, q) if q < 12 else (43, q - 12)
        e(f"buffer_load_dwordx4 v[{4*p}:{4*p+3}], v{vD[q>>2]}, {srd}, s{so} offen offset:{(q&3)*1024}")
    NW1 = X.get('nw1', 8)
    for p in range(NW1): wqk_load(p)
    stamp("iss1")
    S1 = []
    E1 = lambda txt: S1.append(txt)
    E1(f"v_and_b32 v{vI}, 15, v{vL}")
    E1(f"v_lshrrev_b32 v{vG}, 4, v{vL}")
    E1(f"v_and_b32 v{t0}, 6, v{vI}")
    E1(f"v_xor_b32 v{t0}, v{t0}, v{vG}")
    E1(f"v_lshlrev_b32 v{t0}, 4, v{t0}")
    E1(f"v_lshl_add_u32 v{t0}, v{vI}, 7, v{t0}")
    E1(f"v_add_u32 v{vKE}, s{sWB}, v{t0}")
    E1(f"v_xor_b32 v{vKO}, 64, v{vKE}")
    TE, TO, HE, HO, QR = 144, 145, 146, 147, 148
    HV = [149, 150, 151, 152]; QW = [153, 154, 155]; TE2, TO2 = 156, 157
    E1(f"v_add_u32 v{TE}, {24576}, v{t0}")
    E1(f"v_xor_b32 v{TO}, 64, v{TE}")
    E1(f"v_add_u32 v{TE2}, {2*RING}, v{TE}"); E1(f"v_add_u32 v{TO2}, {2*RING}, v{TO}")
    E1(f"v_add_u32 v{HE}, {HC}, v{t0}")
    E1(f"v_xor_b32 v{HO}, 64, v{HE}")
    E1(f"s_mul_i32 s45, s{sW}, {10*CH}"); E1(f"s_add_u32 s45, s45, s36")
    E1(f"s_add_u32 s35, s45, {10*CH}")
    E1(f"s_cmp_ge_u32 s{sQB}, 20"); E1(f"s_cselect_b32 s46, 20, 0")
    E1(f"s_cmp_ge_u32 s{sQB}, 10"); E1(f"s_cselect_b32 s47, 10, 0"); E1(f"s_max_u32 s46, s46, s47")
    E1(f"s_sub_u32 s46, s{sQB}, s46"); E1(f"s_mul_i32 s46, s46, {CH}")
    E1(f"s_add_u32 s{sCH(0)}, s45, s46")
    for j in range(1, 10):
        E1(f"s_add_u32 s{sCH(j)}, s{sCH(j-1)}, {CH}")
        E1(f"s_cmp_eq_u32 s{sCH(j)}, s35"); E1(f"s_cselect_b32 s{sCH(j)}, s45, s{sCH(j)}")
    E1(f"v_lshrrev_b32 v{t1}, 2, v{vI}")
    E1(f"v_lshl_add_u32 v{t1}, v{vG}, 2, v{t1}")
    E1(f"v_and_b32 v{t2}, 6, v{t1}")
    E1(f"v_lshlrev_b32 v{t2}, 4, v{t2}")
    E1(f"v_lshl_add_u32 v{t2}, v{t1}, 7, v{t2}")
    E1(f"v_and_b32 v{t3}, 3, v{vI}")
    E1(f"v_lshl_add_u32 v{t2}, v{t3}, 3, v{t2}")
    for m in range(4):
        E1(f"v_xor_b32 v{t3}, {32*m}, v{t2}")
        E1(f"v_add_u32 v{vV[m]}, s{sWB}, v{t3}")
        E1(f"v_add_u32 v{HV[m]}, {HC}, v{t3}")
    E1(f"v_add_u32 v{QR}, {QB}, v{vD[0]}")
    E1(f"s_mul_i32 s40, s{sW}, 3")
    for ct in range(3):
        E1(f"s_add_u32 s38, s40, {ct}")
        E1(f"s_lshr_b32 s39, s38, 1"); E1(f"s_mul_i32 s39, s39, 3072")
        E1(f"s_and_b32 s38, s38, 1"); E1(f"s_lshl_b32 s38, s38, 3"); E1(f"s_add_u32 s38, s38, s39"); E1(f"s_add_u32 s38, s38, {QB}")
        E1(f"v_add_u32 v{QW[ct]}, s38, v{vD[0]}")
    E1(f"v_mov_b32 v{t0}, 0x3f803f80")
    for k in range(4): E1(f"v_accvgpr_write_b32 a{aONE+k}, v{t0}")
    for k in range(12): E1(f"v_mov_b32 v{192+k}, 0")
    E1(f"s_mov_b32 s{sRETRY}, 0")
    def dma(c, cb, q):
        slot = c % 3
        def f():
            e(f"buffer_load_dwordx4 v{vD[cb]}, {srd}, s{sCH(c)} offen offset:{q*1024} lds", wr=[f"L:s{slot}c{cb}"])
        return f
    def setm0(c, cb):
        return lambda: e(f"s_add_u32 m0, s{sWB}, {(c % 3)*12288 + cb*4096}")
    def dma_chunk_now(c):
        for cb in range(3):
            setm0(c, cb)()
            for q in range(4): dma(c, cb, q)()
    BG = []
    B_ = lambda txt: BG.append(txt)
    B_(f"s_mul_i32 s36, s{sT}, {FS}"); B_(f"s_mul_i32 s37, s{sQB}, 3")
    for qt in range(3):
        B_(f"s_add_u32 s38, s37, {qt}")
        B_(f"s_lshr_b32 s39, s38, 1"); B_(f"s_mul_i32 s39, s39, {CH}")
        B_(f"s_and_b32 s38, s38, 1"); B_(f"s_lshl_b32 s38, s38, 11")
        B_(f"s_add_u32 s39, s39, s38"); B_(f"s_add_u32 s{sG(qt)}, s39, s36")
    B_(f"s_mul_i32 s36, s{sW}, 6")
    def h2off(dst, c16reg):
        B_(f"v_and_b32 v{t1}, 7, v{c16reg}")
        B_(f"v_and_b32 v{t2}, 6, v{vI}")
        B_(f"v_xor_b32 v{t1}, v{t1}, v{t2}")
        B_(f"v_lshlrev_b32 v{t1}, 4, v{t1}")
        B_(f"v_lshl_add_u32 v{t1}, v{vI}, 7, v{t1}")
        B_(f"v_lshrrev_b32 v{t2}, 3, v{c16reg}")
        B_(f"v_lshl_add_u32 v{dst}, v{t2}, 12, v{t1}")
    B_(f"v_add_u32 v{t0}, s36, v{vG}")
    h2off(vR4, t0)
    B_(f"v_lshrrev_b32 v{t0}, 1, v{vG}")
    B_(f"s_add_u32 s37, s36, 4")
    B_(f"v_add_u32 v{t0}, s37, v{t0}")
    h2off(vR2, t0)
    B_(f"v_and_b32 v{t0}, 1, v{vG}")
    B_(f"v_lshl_add_u32 v{vR2}, v{t0}, 3, v{vR2}")
    B_(f"v_lshlrev_b32 v{vI8}, 3, v{vI}")
    B_(f"s_mul_i32 s38, s{sT}, {N}"); B_(f"s_mul_i32 s39, s{sQB}, 48"); B_(f"s_add_u32 s38, s38, s39"); B_(f"s_lshl_b32 s38, s38, 3")
    for qt in range(3): B_(f"s_add_u32 s{sST(qt)}, s38, {WS_STAT + qt*128}")
    bg_need = len(BG)
    B_(f"v_lshlrev_b32 v{t0}, 3, v{vL}")
    B_(f"s_add_u32 s38, s{sWB}, 12288")
    B_(f"v_add_u32 v{vPW}, s38, v{t0}")
    B_(f"v_lshrrev_b32 v{t0}, 2, v{vI}")
    B_(f"v_cmp_eq_u32 vcc, v{t0}, v{vG}")
    B_(f"v_and_b32 v{t1}, 1, v{vI}")
    B_(f"v_mov_b32 v{t2}, 0x3f80")
    B_(f"v_lshlrev_b32 v{t1}, 4, v{t1}")
    B_(f"v_lshlrev_b32 v{t2}, v{t1}, v{t2}")
    B_(f"v_cndmask_b32 v{t2}, 0, v{t2}, vcc")
    B_(f"v_and_b32 v{t1}, 2, v{vI}")
    B_(f"v_cmp_eq_u32 vcc, 0, v{t1}")
    B_(f"v_cndmask_b32 v{t0}, 0, v{t2}, vcc")
    B_(f"v_cmp_ne_u32 vcc, 0, v{t1}")
    B_(f"v_cndmask_b32 v{t1}, 0, v{t2}, vcc")
    B_(f"v_accvgpr_write_b32 a{aSEL}, v{t0}"); B_(f"v_accvgpr_write_b32 a{aSEL+1}, v{t1}")
    B_(f"v_accvgpr_write_b32 a{aSEL+2}, v{t0}"); B_(f"v_accvgpr_write_b32 a{aSEL+3}, v{t1}")
    tA, P0, P1, OW, OR = 248, 250, 251, [252, 253, 254], 255
    B_(f"v_lshlrev_b32 v{tA}, 2, v{vI}")
    B_(f"s_mul_i32 s40, s{sW}, 192"); B_(f"s_add_u32 s40, s40, {LX}")
    B_(f"v_add_u32 v{tA+1}, s40, v{tA}")
    B_(f"v_add_u32 v{tA}, {LX}, v{tA}")
    B_(f"v_lshlrev_b32 v{P0}, 3, v{vL}")
    B_(f"s_mul_i32 s40, s{sW}, 4608"); B_(f"s_add_u32 s40, s40, 12288")
    B_(f"v_add_u32 v{P0}, s40, v{P0}")
    B_(f"v_add_u32 v{P1}, {2*RING}, v{P0}")
    for nt in range(3):
        B_(f"s_mul_i32 s40, s{sW}, 3"); B_(f"s_add_u32 s40, s40, {nt}")
        B_(f"s_lshr_b32 s41, s40, 1"); B_(f"s_mul_i32 s41, s41, 3072"); B_(f"s_and_b32 s40, s40, 1"); B_(f"s_lshl_b32 s40, s40, 3")
        B_(f"s_add_u32 s40, s40, s41"); B_(f"s_add_u32 s40, s40, {OB}")
        B_(f"v_add_u32 v{OW[nt]}, s40, v{vD[0]}")
    B_(f"v_add_u32 v{OR}, {OB}, v{vD[0]}")
    bg_total = len(BG)
    for txt in S1: e(txt)
    e(f"s_add_u32 s{sWVO}, s42, {WS_WVO}")
    e(f"s_add_u32 s{sWVO+1}, s42, {WS_WVO + 12288}")
    stamp("setup")
    stream = [("w", p) for p in range(NW1, 18)] + [("d", 0, k >> 2, k & 3) for k in range(12)] + [("d", 1, k >> 2, k & 3) for k in range(12)]
    def issue(n=1):
        for _ in range(n):
            if not stream: return
            it = stream.pop(0)
            if it[0] == "w": wqk_load(it[1])
            else:
                _, cc, cb, q = it
                if q == 0: setm0(cc, cb)()
                dma(cc, cb, q)()
    issue(X.get('pre_tile', 6))
    E.waitfor(rd=["L:tile"])
    stamp("tilew", 'front')
    issue(X.get('post_tile', 0))
    e("s_barrier")
    stamp("tile")
    for ks in range(6):
        for qt in range(3):
            adr = ((TO if ks & 1 else TE) if qt < 2 else (TO2 if ks & 1 else TE2))
            off = (qt * RING if qt < 2 else 0) + (ks >> 1) * 2048
            e(f"ds_read_b128 {ar(aW(ks,qt),4)}, v{adr} offset:{off}")
    hreads = []
    for ks in range(6):
        hreads.append(f"ds_read_b128 {ar(aHK(ks),4)}, v{HO if ks&1 else HE} offset:{(ks>>1)*2048}")
    for dt in range(12):
        hreads.append(f"ds_read_b64_tr_b16 {ar(aHV(dt),2)}, v{HV[dt&3]} offset:{(dt>>2)*2048}")
    ACC = lambda ct, qt: 72 + (ct * 3 + qt) * 4
    packq = []
    def pack_items(ct):
        it = []
        for qt in range(3):
            a_ = ACC(ct, qt)
            it.append(f"v_cvt_pk_bf16_f32 v{a_}, v{a_}, v{a_+1}")
            it.append(f"v_cvt_pk_bf16_f32 v{a_+1}, v{a_+2}, v{a_+3}")
            it.append(f"ds_write_b64 v{QW[ct]}, {vr(a_,2)} offset:{qt*1024}")
        return it
    issue(X.get('post_reads', 2))
    for ct in range(3):
        for ks in range(6):
            for qt in range(3):
                c = "0" if ks == 0 else vr(ACC(ct, qt), 4)
                e(f"{MF} {vr(ACC(ct,qt),4)}, {vr((ct*6+ks)*4,4)}, {ar(aW(ks,qt),4)}, {c}")
                if qt == 0:
                    if ks >= 2 and packq: e(packq.pop(0))
                if qt == 1:
                    e(hreads.pop(0))
                    issue(X.get('gdma', 1))
                if qt == 2 and ks >= 2:
                    for _ in range(2):
                        if packq: e(packq.pop(0))
                if qt == 2 and (ct * 6 + ks) % 2 == 0: stamp(f"g{ct*6+ks}", 'gemm')
        packq += pack_items(ct)
    stamp("qgemm")
    for x_ in packq: e(x_)
    E.wait(lgkm=0)
    e("s_barrier")
    stamp("qx")
    for ks in range(6):
        for qt in range(3):
            e(f"ds_read_b128 {ar(aQ(ks,qt),4)}, v{QR} offset:{ks*3072 + qt*1024}")
        issue(X.get('rdma', 1))
    issue(99)
    stamp("qready")
    E.label("K2_RUN")
    run_state = (len(E.vm))
    frags = []
    for c in range(10):
        if c == 0: frags += [("K", 0, gi) for gi in range(12)]
        if c + 1 <= 9: frags += [("K", c + 1, gi) for gi in range(12)]
        frags += [("V", c, gi) for gi in range(12)]
    def read_frag(n):
        kind, c, gi = frags[n]; slot = c % 3; b = aB(n)
        if kind == "K":
            ks, kt = gi >> 1, gi & 1
            return [lambda: e(f"ds_read_b128 {ar(b,4)}, v{vKO if ks&1 else vKE} offset:{slot*12288 + (ks>>1)*4096 + kt*2048}", rd=[f"L:s{slot}c{ks>>1}"])]
        dt = gi
        return [lambda hh=hh: e(f"ds_read_b64_tr_b16 {ar(b+2*hh,2)}, v{vV[dt&3]} offset:{slot*12288 + (dt>>2)*4096 + hh*2048}", rd=[f"L:s{slot}c{dt>>2}"]) for hh in range(2)]
    def exp_item(c, k):
        qt, kt, r = k >> 3, (k >> 2) & 1, k & 3
        reg = S(c & 1, qt, kt) + r
        f = lambda: e(f"v_exp_f32 v{reg}, v{reg}")
        f.cost = 2
        return f
    def cvt_item(c, qt, p):
        base = S(c & 1, qt, 0); src = base + 2 * p
        return lambda: e(f"v_cvt_pk_bf16_f32 v{base+p}, v{src}, v{src+1}")
    def put_bg(gap, n=2):
        k = 0
        while BG and k < n:
            txt = BG[0]
            if txt.startswith("s_"):
                if len(gap.pre) >= 2: break
                gap.pre.append(lambda txt=txt: e(txt)); BG.pop(0)
                if gap.valu or gap.mem: break
                continue
            gap.valu.append(lambda txt=txt: e(txt)); BG.pop(0); k += 1
            if BG and BG[0].startswith("s_"): break
    def fill_bg(gaps, c):
        if c > 8 or X.get('nobg'): return
        for g in gaps:
            r = g.room()
            if r > 0 and not g.mem: put_bg(g, min(r, X.get('bgn', 2)))
    fn = [0]
    def put_reads(gap):
        n = fn[0] + DPF
        if n < len(frags): gap.mem += read_frag(n)
    def wait_next(gap):
        n = fn[0] + 1
        if n < len(frags):
            b = aB(n)
            gap.pre.append(lambda: E.waitfor(rd=[ar(b, 4)]))
    def phase_qk(c, plan):
        for gi in range(12):
            ks, kt = gi >> 1, gi & 1
            n = fn[0]; assert frags[n] == ("K", c, gi)
            gaps = [Gap(), Gap(), Gap()]
            put_reads(gaps[0]); wait_next(gaps[2])
            plan(gi, gaps)
            fill_bg(gaps, c)
            for qt in range(3):
                d = vr(S(c & 1, qt, kt), 4)
                cc = vr(NEGM(qt), 4) if ks == 0 else d
                e(f"{MF} {d}, {ar(aB(n),4)}, {ar(aQ(ks,qt),4)}, {cc}")
                gaps[qt].emit()
            fn[0] += 1
    def phase_pv(c, planL, plan):
        first = (c == 0)
        for qt in range(3):
            g = Gap(); planL(qt, g)
            P = vr(S(c & 1, qt, 0), 4)
            e(f"{MF} {ar(aL(qt),4)}, {ar(aONE,4)}, {P}, {'0' if first else ar(aL(qt),4)}")
            g.emit()
        for gi in range(12):
            n = fn[0]; assert frags[n] == ("V", c, gi)
            gaps = [Gap(), Gap(), Gap()]
            put_reads(gaps[0]); wait_next(gaps[2])
            plan(gi, gaps)
            fill_bg(gaps, c + 1)
            for qt in range(3):
                d = vr(O(gi, qt), 4)
                e(f"{MF} {d}, {ar(aB(n),4)}, {vr(S(c&1,qt,0),4)}, {'0' if first else d}")
                gaps[qt].emit()
            fn[0] += 1
    def put_dma(gap, c, k, prev=None):
        cb, q = k >> 2, k & 3
        if X.get('nodma'): return
        if q == 0: (prev or gap).pre.append(setm0(c, cb))
        gap.mem.append(dma(c, cb, q))
    extra = []
    for p in range(18):
        so, q = (sWVO, p) if p < 12 else (sWVO + 1, p - 12)
        extra.append(lambda p=p, so=so, q=q: e(f"buffer_load_dwordx4 {ar(160+4*p,4)}, v{vD[q>>2]}, {srd}, s{so} offen offset:{(q&3)*1024}"))
    for qt in range(3):
        extra.append(lambda qt=qt: e(f"buffer_load_dwordx4 {vr(RES(qt),4)}, v{vR4}, {srd}, s{sG(qt)} offen"))
        extra.append(lambda qt=qt: e(f"buffer_load_dwordx2 {vr(RES(qt)+4,2)}, v{vR2}, {srd}, s{sG(qt)} offen"))
        extra.append(lambda qt=qt: e(f"buffer_load_dwordx2 {vr(STT(qt),2)}, v{vI8}, {srd}, s{sST(qt)} offen"))
    def variant(tag, body):
        e(f"s_cmp_eq_u32 s{sW}, 3"); e(f"s_cbranch_scc1 K2_{tag}_END")
        states = [E.snapshot()]
        e(f"s_cmp_eq_u32 s{sW}, 1"); e(f"s_cbranch_scc1 K2_{tag}_1")
        e(f"s_cmp_eq_u32 s{sW}, 2"); e(f"s_cbranch_scc1 K2_{tag}_2")
        snap = E.snapshot()
        for w in range(3):
            E.restore(snap)
            if w: E.label(f"K2_{tag}_{w}")
            body(w)
            if w < 2: e(f"s_branch K2_{tag}_END")
            states.append(E.snapshot())
        E.merge(states)
        E.label(f"K2_{tag}_END")
    for n in range(DPF):
        for f in read_frag(n): f()
    def qkh(w):
        for ks in range(6):
            cc = vr(NEGM(w), 4) if ks == 0 else vr(SH, 4)
            e(f"{MF} {vr(SH,4)}, {ar(aHK(ks),4)}, {ar(aQ(ks,w),4)}, {cc}")
    E.waitfor(rd=[ar(aB(0), 4), ar(aQ(0, 2), 4)])
    def plan(gi, gaps):
        if gi == 5: gaps[2].pre.append(lambda: (E.waitfor(rd=[ar(aQ(5, 2), 4), ar(aHV(11), 2), ar(aHK(5), 4)]), e("s_barrier")))
        if gi >= 6:
            k = 2 * (gi - 6)
            put_dma(gaps[1], 2, k, gaps[0]); put_dma(gaps[2], 2, k + 1, gaps[1])
    phase_qk(0, plan)
    E.waitfor(rd=[ar(aQ(5, 2), 4), ar(aHV(11), 2), ar(aHK(5), 4)])
    variant("QKH", qkh)
    stamp("qk0")
    xi = [0]
    def put_extra(gap):
        if X.get('noextra'): xi[0] = len(extra); return
        if xi[0] < len(extra):
            if xi[0] >= 18: assert bg_total - len(BG) >= bg_need + 2, "residual loads before their addresses"
            gap.mem.append(extra[xi[0]]); xi[0] += 1
    for j in range(10):
        c = j + 1
        if c <= 9:
            if j == 0:
                def plan(gi, gaps):
                    gaps[1].valu.append(exp_item(0, 2 * gi)); gaps[2].valu.append(exp_item(0, 2 * gi + 1))
                    if gi >= 1: gaps[0].valu.append(cvt_item(0, (gi - 1) >> 2, (gi - 1) & 3))
                phase_qk(c, plan)
                cvt_item(0, 2, 3)()
            else:
                def plan(gi, gaps):
                    if gi <= 8: gaps[1].valu.append(exp_item(j, 15 + gi))
                    if 1 <= gi <= 4: gaps[0].valu.append(cvt_item(j, 1, gi - 1))
                    if 5 <= gi <= 7: gaps[0].valu.append(cvt_item(j, 2, gi - 5))
                    if gi == 9: gaps[2].valu.append(cvt_item(j, 2, 3))
                    if j + 2 <= 9:
                        if gi <= 8: put_dma(gaps[2], j + 2, gi, gaps[1])
                        else: put_dma(gaps[1], j + 2, gi, gaps[0])
                phase_qk(c, plan)
        if c <= 8 or c == 9:
            last = (c == 9)
            def planL(qt, g): g.valu.append(exp_item(c, qt))
            def plan(gi, gaps):
                if not last:
                    gaps[1].valu.append(exp_item(c, 3 + gi))
                    if 5 <= gi <= 8: gaps[2].valu.append(cvt_item(c, 0, gi - 5))
                    elif j == 0 and gi < 4:
                        f = lambda r=gi: e(f"v_exp_f32 v{SH+r}, v{SH+r}")
                        f.cost = 2; gaps[2].valu.append(f)
                    elif j == 0 and gi == 4: gaps[2].valu.append(lambda: e(f"v_cvt_pk_bf16_f32 v{SH}, v{SH}, v{SH+1}"))
                    elif j == 0 and gi == 9: gaps[2].valu.append(lambda: e(f"v_cvt_pk_bf16_f32 v{SH+1}, v{SH+2}, v{SH+3}"))
                    elif gi in X.get('xg', (1, 3, 10, 11) if j >= 2 else (1, 3, 10)): put_extra(gaps[2])
                else:
                    k = 3 + 2 * gi
                    if k < 24: gaps[1].valu.append(exp_item(c, k))
                    if k + 1 < 24: gaps[2].valu.append(exp_item(c, k + 1))
                    for qt in range(3):
                        for p in range(4):
                            done = 8 * qt + 2 * p + 1
                            gdone = (done - 3) // 2 if done >= 3 else -1
                            if min(gdone + 1, 11) == gi: gaps[0].valu.append(cvt_item(c, qt, p))
            phase_pv(j, planL, plan)
        else:
            pend = []
            for dt in range(12):
                for qt in range(3):
                    a = O(dt, qt)
                    pend.append((dt, qt, a))
            items = []
            def mk(dt, qt):
                a = O(dt, qt)
                return [lambda: e(f"v_cvt_pk_bf16_f32 v{a}, v{a}, v{a+1}"),
                        lambda: e(f"v_cvt_pk_bf16_f32 v{a+1}, v{a+2}, v{a+3}"),
                        lambda: e(f"ds_write_b64 v{vPW}, {vr(a,2)} offset:{(dt*3+qt)*512}", wr=["L:part"])]
            cv = []; wq = []
            for (dt, qt, a) in pend:
                m = mk(dt, qt); cv.append((dt, m[0])); cv.append((dt, m[1])); wq.append((dt, m[2]))
            st = {"c": 0, "w": 0}
            def planL(qt, g): pass
            def plan(gi, gaps):
                for k in range(3):
                    g = gaps[k]
                    room = 2 - len(g.mem)
                    if room > 0 and st["w"] < len(wq) and 2 * (st["w"] + 1) <= st["c"]:
                        g.mem.append(wq[st["w"]][1]); st["w"] += 1; room -= 1
                    while room > 0 and st["c"] < len(cv) and cv[st["c"]][0] <= gi - 2:
                        g.valu.append(cv[st["c"]][1]); st["c"] += 1; room -= 1
            phase_pv(9, planL, plan)
            stamp("pv9")
            while st["c"] < len(cv) or st["w"] < len(wq):
                if st["w"] < len(wq) and 2 * (st["w"] + 1) <= st["c"]:
                    wq[st["w"]][1](); st["w"] += 1
                else:
                    cv[st["c"]][1](); st["c"] += 1
        if j == 0:
            def pvh(w):
                e(f"{MF16} {ar(aL(w),4)}, {ar(aONE,2)}, {vr(SH,2)}, {ar(aL(w),4)}")
                for dt in range(12):
                    e(f"{MF16} {vr(O(dt,w),4)}, {ar(aHV(dt),2)}, {vr(SH,2)}, {vr(O(dt,w),4)}")
            variant("PVH", pvh)
        if j in X.get('itstamps', (0, 4, 8)): stamp(f"it{j}")
    assert xi[0] == len(extra)
    assert not BG, len(BG)
    for qt in range(3):
        e(f"ds_write_b32 v{tA+1}, a{aL(qt)} offset:{qt*64}", wr=["L:lx"])
    E.wait(lgkm=0)
    e("s_barrier")
    stamp("bar1")
    LT = 152
    for qt in range(3):
        for w in range(4):
            e(f"ds_read_b32 v{LT+qt*4+w}, v{tA} offset:{w*192+qt*64}")
    SUM = lambda tl: 72 + 4 * tl
    RL = 164
    chk = []
    MK = ["s[38:39]", "s[40:41]", "s[42:43]", "s[44:45]", "s[46:47]", "vcc"]
    C_ = lambda txt: chk.append(txt)
    for qt in range(3):
        C_(f"v_add_f32 v{LT+qt*4}, v{LT+qt*4}, v{LT+qt*4+1}")
        C_(f"v_add_f32 v{LT+qt*4+2}, v{LT+qt*4+2}, v{LT+qt*4+3}")
        C_(f"v_add_f32 v{LT+qt*4}, v{LT+qt*4}, v{LT+qt*4+2}")
    for qt in range(3):
        C_(f"v_cmp_le_f32 {MK[2*qt]}, s36, v{LT+qt*4}")
        C_(f"v_cmp_ge_f32 {MK[2*qt+1]}, s37, v{LT+qt*4}")
        C_(f"v_rcp_f32 v{RL+qt}, v{LT+qt*4}")
    e(f"s_mov_b32 s36, 0x21800000")
    e(f"s_mov_b32 s37, 0x5f800000")
    reads = []
    for nt in range(3):
        for qt in range(3):
            tl = nt * 3 + qt
            for src in range(4):
                adr = P0 if src < 2 else P1
                reads.append(f"ds_read_b64 {vr(tl*8+2*src,2)}, v{adr} offset:{(src&1)*RING + tl*512}")
    ri = 0
    def more_reads(n):
        nonlocal ri
        for _ in range(n):
            if ri < len(reads): e(reads[ri]); ri += 1
    more_reads(12)
    ci = 0
    packs = []
    for tl in range(9):
        for half in range(2):
            e(f"{MF} {vr(SUM(tl),4)}, {ar(aSEL,4)}, {vr(tl*8+4*half,4)}, {'0' if half == 0 else vr(SUM(tl),4)}")
            more_reads(2)
            if ci < len(chk) and tl >= 1: e(chk[ci]); ci += 1
            if ci < len(chk) and tl >= 6: e(chk[ci]); ci += 1
    while ci < len(chk): e(chk[ci]); ci += 1
    for k in range(1, 6): e(f"s_and_b64 s[38:39], s[38:39], {MK[k]}")
    e(f"s_cmp_eq_u64 s[38:39], exec")
    e(f"s_cselect_b32 s36, 1, s{sRETRY}")
    e(f"s_cmp_eq_u32 s36, 0")
    e(f"s_cbranch_scc1 K2_FALLBACK")
    for tl in range(9):
        nt, qt = tl // 3, tl % 3
        a_ = SUM(tl)
        e(f"v_cvt_pk_bf16_f32 v{a_}, v{a_}, v{a_+1}")
        e(f"v_cvt_pk_bf16_f32 v{a_+1}, v{a_+2}, v{a_+3}")
        e(f"ds_write_b64 v{OW[nt]}, {vr(a_,2)} offset:{qt*1024}")
    RF = lambda qt, j: 108 + qt * 12 + j
    O4, O2 = 168, 169
    resops = [f"v_mul_u32_u24 v{O4}, 384, v{vI}", f"v_lshl_add_u32 v{O2}, v{vG}, 3, v{O4}", f"v_lshl_add_u32 v{O4}, v{vG}, 4, v{O4}"]
    for qt in range(3):
        for j in range(12):
            raw = RES(qt) + (j >> 1); d = RF(qt, j)
            if j & 1: resops.append(f"v_and_b32 v{d}, 0xffff0000, v{raw}")
            else: resops.append(f"v_lshlrev_b32 v{d}, 16, v{raw}")
            resops.append(f"v_fma_f32 v{d}, v{d}, v{STT(qt)+1}, v{STT(qt)}")
    ri2 = 0
    for _ in range(27): e(resops[ri2]); ri2 += 1
    e(f"s_mul_i32 s36, s{sT}, {XFS}"); e(f"s_mul_i32 s37, s{sQB}, {48*384}"); e(f"s_add_u32 s36, s36, s37")
    e(f"s_mul_i32 s37, s{sW}, 96"); e(f"s_add_u32 s36, s36, s37")
    e(f"s_add_u32 s37, s36, {16*384}"); e(f"s_add_u32 s38, s36, {32*384}")
    E.wait(lgkm=0)
    e("s_barrier")
    stamp("bar2")
    BF = lambda qt, ks: (qt * 6 + ks) * 4
    for qt in range(3):
        for ks in range(6):
            e(f"ds_read_b128 {vr(BF(qt,ks),4)}, v{OR} offset:{(ks*3+qt)*1024}")
    AC = lambda nt, qt: 72 + (qt * 3 + nt) * 4
    fin = []
    def fin_items(qt):
        a_ = AC(0, qt); it = []
        for j in range(12): it.append(f"v_fma_f32 v{a_+j}, v{a_+j}, v{RL+qt}, v{RF(qt,j)}")
        for p in range(6): it.append(f"v_cvt_pk_bf16_f32 v{a_+p}, v{a_+2*p}, v{a_+2*p+1}")
        it.append(f"buffer_store_dwordx4 {vr(a_,4)}, v{O4}, s[{sOUT}:{sOUT+3}], s{36+qt} offen")
        it.append(f"buffer_store_dwordx2 {vr(a_+4,2)}, v{O2}, s[{sOUT}:{sOUT+3}], s{36+qt} offen offset:64")
        return it
    for qt in range(3):
        k = 0
        for ks in range(6):
            for nt in range(3):
                d = vr(AC(nt, qt), 4)
                e(f"{MF} {d}, {ar(aW(ks,nt),4)}, {vr(BF(qt,ks),4)}, {'0' if ks == 0 else d}")
                n = 0
                while n < 2 and ri2 < len(resops): e(resops[ri2]); ri2 += 1; n += 1
                while n < 2 and fin and k >= 3: e(fin.pop(0)); n += 1
                k += 1
        while ri2 < len(resops) and qt == 0 and False: pass
        fin += fin_items(qt)
    stamp("oproj")
    while ri2 < len(resops): e(resops[ri2]); ri2 += 1
    for x_ in fin: e(x_)
    if stamps:
        stamp("end")
        e("s_memrealtime s[98:99]")
        E.wait(lgkm=0)
        e(f"s_lshl_b32 s36, s2, 2"); e(f"s_add_u32 s36, s36, s{sW}"); e(f"s_lshl_b32 s36, s36, 7")
        e(f"s_add_u32 s36, s36, {WS_END}")
        e(f"s_load_dwordx2 s[92:93], s[0:1], 56"); E.wait(lgkm=0)
        e(f"s_and_b32 s93, s93, 0xffff"); e(f"s_mov_b32 s94, 0x1000000"); e(f"s_mov_b32 s95, 0x20000")
        e(f"v_mov_b32 v1, s36")
        for k in range(1, nstamp[0]):
            e(f"s_sub_u32 s36, s{50+2*k}, s50"); e(f"v_mov_b32 v0, s36")
            e(f"buffer_store_dword v0, v1, s[92:95], 0 offen offset:{4*k}")
        e(f"v_mov_b32 v0, s98")
        e(f"buffer_store_dword v0, v1, s[92:95], 0 offen offset:124")
        e(f"v_mov_b32 v0, s96")
        e(f"buffer_store_dword v0, v1, s[92:95], 0 offen offset:120")
    E.label("K2_EXIT")
    e("s_endpgm")
    E.label("K2_FALLBACK")
    E.vm = []; E.lg = []; E.settle()
    e("s_waitcnt vmcnt(0) lgkmcnt(0)")
    e("s_nop 7"); e("s_nop 7")
    MX = [144, 145, 146]; TS = 148
    for qt in range(3):
        for ks in range(6):
            e(f"{MF} {vr(TS+4*qt,4)}, {ar(aHK(ks),4)}, {ar(aQ(ks,qt),4)}, {'0' if ks == 0 else vr(TS+4*qt,4)}")
    for qt in range(3):
        a = TS + 4 * qt
        e(f"v_max3_f32 v{MX[qt]}, v{a}, v{a+1}, v{a+2}")
        e(f"v_max_f32 v{MX[qt]}, v{MX[qt]}, v{a+3}")
    e(f"s_mov_b32 s40, 0")
    e(f"s_mul_i32 s41, s{sW}, {10*CH}"); e(f"s_mul_i32 s42, s{sT}, {FS}"); e(f"s_add_u32 s41, s41, s42")
    E.wait_all(); e("s_nop 7")
    E.label("K2_FB_LOOP"); E.settle()
    for cb in range(3):
        e(f"s_add_u32 m0, s{sWB}, {cb*4096}")
        for q in range(4):
            e(f"buffer_load_dwordx4 v{vD[cb]}, {srd}, s41 offen offset:{q*1024} lds", wr=["L:fb"])
    for kt in range(2):
        for ks in range(6):
            e(f"ds_read_b128 {ar(88+4*ks,4)}, v{vKO if ks&1 else vKE} offset:{(ks>>1)*4096 + kt*2048}", rd=["L:fb"])
        for qt in range(3):
            for ks in range(6):
                e(f"{MF} {vr(TS+4*qt,4)}, {ar(88+4*ks,4)}, {ar(aQ(ks,qt),4)}, {'0' if ks == 0 else vr(TS+4*qt,4)}")
        for qt in range(3):
            a = TS + 4 * qt
            e(f"v_max3_f32 v{MX[qt]}, v{MX[qt]}, v{a}, v{a+1}")
            e(f"v_max3_f32 v{MX[qt]}, v{MX[qt]}, v{a+2}, v{a+3}")
    e(f"s_add_u32 s41, s41, {CH}"); e(f"s_add_u32 s40, s40, 1")
    E.wait_all(); e("s_nop 7")
    e(f"s_cmp_lt_u32 s40, 10"); e("s_cbranch_scc1 K2_FB_LOOP")
    for qt in range(3):
        m = MX[qt]; t = TS
        e(f"v_mov_b32 v{t}, v{m}"); e(f"v_permlane16_swap_b32 v{m}, v{t}"); e(f"v_max_f32 v{m}, v{m}, v{t}")
        e(f"v_mov_b32 v{t}, v{m}"); e(f"v_permlane32_swap_b32 v{m}, v{t}"); e(f"v_max_f32 v{m}, v{m}, v{t}")
    e(f"v_lshlrev_b32 v{TS}, 2, v{vI}")
    e(f"s_mul_i32 s36, s{sW}, 192"); e(f"s_add_u32 s36, s36, {LX + 1024}")
    e(f"v_add_u32 v{TS+1}, s36, v{TS}"); e(f"v_add_u32 v{TS}, {LX + 1024}, v{TS}")
    for qt in range(3): e(f"ds_write_b32 v{TS+1}, v{MX[qt]} offset:{qt*64}")
    E.wait(lgkm=0); e("s_barrier")
    for qt in range(3):
        for w in range(4): e(f"ds_read_b32 v{TS+2+qt*4+w}, v{TS} offset:{w*192+qt*64}")
    for qt in range(3):
        a = TS + 2 + qt * 4
        e(f"v_max3_f32 v{a}, v{a}, v{a+1}, v{a+2}"); e(f"v_max_f32 v{a}, v{a}, v{a+3}")
        for k in range(4): e(f"v_sub_f32 v{NEGM(qt)+k}, 0, v{a}")
    e(f"s_mov_b32 s{sRETRY}, 1")
    E.wait_all()
    e("s_barrier")
    dma_chunk_now(0); dma_chunk_now(1)
    e("s_nop 7")
    e("s_branch K2_RUN")
    E.label("K2_CODE_END")
    kd = """
.section .rodata,"a"
.p2align 6
.amdhsa_kernel k2_kernel
  .amdhsa_next_free_vgpr 512
  .amdhsa_next_free_sgpr 100
  .amdhsa_accum_offset 256
  .amdhsa_group_segment_fixed_size 0
  .amdhsa_kernarg_size 64
  .amdhsa_user_sgpr_count 2
  .amdhsa_user_sgpr_kernarg_segment_ptr 1
  .amdhsa_system_sgpr_workgroup_id_x 1
  .amdhsa_float_denorm_mode_32 3
.end_amdhsa_kernel
.text
"""
    return E, kd

if __name__ == "__main__":
    E, kd = gen_k2()
    print(E.text())
    import sys
    print("; nins", E.nins, "nops", E.nops, "waits", E.waits, file=sys.stderr)
```

```python
import sys
from layout import *
import k1, k2, align
ALIGN = True
HEAD = """; TimeSformer divided space-time attention block (temporal attention + spatial attention), gfx950.
"""
def assemble(launches, parts):
    s = HEAD
    for (k, g, b, lds) in launches:
        s += f"; @launch kernel={k} grid=({g},1,1) block=({b},1,1) lds={lds}\n"
    s += '.amdgcn_target "amdgcn-amd-amdhsa--gfx950"\n.text\n'
    kds = ""
    for (E, kd) in parts:
        t = E.text()
        if ALIGN and hasattr(E, 'nins'):
            rep = []; t = align.fix(t, rep)
        s += t; kds += kd
    return s + kds
def k2_only(stamps=False, X=None):
    return assemble([("k2_kernel", 216, 256, 163840)], [k2.gen_k2(stamps=stamps, X=X)])

def k1_only(stamps=False, X=None):
    return assemble([("k1_kernel", 256, 256, k1.LDS1)], [k1.gen_k1(stamps=stamps, X=X)])
def full(stamps=False, X1=None, X2=None):
    return assemble([("k1_kernel", 256, 256, k1.LDS1), ("k2_kernel", 216, 256, 163840)],
                    [k1.gen_k1(stamps=stamps, X=X1), k2.gen_k2(stamps=stamps, X=X2)])
if __name__ == "__main__":
    open(sys.argv[1], "w").write(full())
```

```python
import re

def _expand(tok):
    tok = tok.strip()
    m = re.fullmatch(r"([vas])\[(\d+):(\d+)\]", tok)
    if m:
        return [m.group(1) + str(i) for i in range(int(m.group(2)), int(m.group(3)) + 1)]
    m = re.fullmatch(r"([vas])(\d+)", tok)
    if m:
        return [tok]
    if tok in ("vcc", "exec", "m0", "scc"):
        return [tok]
    if tok in ("vcc_lo", "vcc_hi"):
        return ["vcc"]
    if tok in ("exec_lo", "exec_hi"):
        return ["exec"]
    if tok.startswith("-") and len(tok) > 1 and tok[1] in "vas":
        return _expand(tok[1:])
    m = re.fullmatch(r"abs\((.*)\)", tok)
    if m:
        return _expand(m.group(1))
    m = re.fullmatch(r"\|(.*)\|", tok)
    if m:
        return _expand(m.group(1))
    return []

TRANS = ("v_exp_f32", "v_log_f32", "v_rcp_f32", "v_rsq_f32", "v_sqrt_f32", "v_sin_f32", "v_cos_f32")
NOSIZE = None

class Ins:
    __slots__ = ("text", "op", "kind", "rd", "wr", "passes", "srcC", "srcAB", "dstD", "wide", "note", "size")
    def __init__(self, text, rd=(), wr=(), note=None):
        self.text = text
        self.note = note
        body = text.split(";")[0].strip()
        parts = body.split(None, 1)
        op = parts[0]
        self.op = op
        rest = parts[1] if len(parts) > 1 else ""
        ops = [o.strip() for o in re.split(r",(?![^\[]*\])", rest)] if rest else []
        mods = ""
        if ops:
            sp = ops[-1].split(None, 1)
            ops[-1] = sp[0]
            mods = sp[1] if len(sp) > 1 else ""
        R, W = set(rd), set(wr)
        self.passes = 0; self.srcC = set(); self.srcAB = set(); self.dstD = set(); self.wide = False
        ex = lambda i: _expand(ops[i]) if i < len(ops) else []
        allsrc = lambda a: [r for i in range(a, len(ops)) for r in _expand(ops[i])]
        base = re.sub(r"_(e32|e64|sdwa|dpp)$", "", op)
        if op.startswith("v_mfma"):
            k = "mfma"
            self.passes = 8 if "32x32" in op else 4
            self.dstD = set(ex(0)); self.srcAB = set(ex(1) + ex(2)); self.srcC = set(ex(3))
            W |= self.dstD; R |= self.srcAB | self.srcC
        elif op.startswith("v_cmp"):
            k = "valu"; W |= set(ex(0)); R |= set(allsrc(1))
            if op.startswith("v_cmpx"): W.add("exec")
        elif base in ("v_readfirstlane_b32", "v_readlane_b32"):
            k = "valu"; W |= set(ex(0)); R |= set(allsrc(1))
        elif base in ("v_permlane16_swap_b32", "v_permlane32_swap_b32"):
            k = "valu"; W |= set(ex(0) + ex(1)); R |= set(ex(0) + ex(1))
        elif base in ("v_fmac_f32", "v_dot2c_f32_bf16", "v_writelane_b32"):
            k = "valu"; W |= set(ex(0)); R |= set(allsrc(0))
        elif base in ("v_add_co_u32", "v_sub_co_u32", "v_addc_co_u32", "v_subb_co_u32"):
            k = "valu"; W |= set(ex(0) + ex(1)); R |= set(allsrc(2))
        elif op.startswith("v_"):
            k = "trans" if base in TRANS else "valu"
            W |= set(ex(0)); R |= set(allsrc(1))
            if "_dpp" in op or "row_" in mods or "quad_perm" in rest: R |= set(ex(0));
        elif op.startswith("ds_read") or op.startswith("ds_bpermute") or op.startswith("ds_swizzle"):
            k = "dsr"; W |= set(ex(0)); R |= set(allsrc(1))
        elif op.startswith("ds_write") or op.startswith("ds_add") or op.startswith("ds_max") or op.startswith("ds_or"):
            k = "dsw"; R |= set(allsrc(0))
        elif op.startswith("buffer_load") or op.startswith("global_load"):
            if re.search(r"\blds\b", mods) or op.startswith("global_load_lds"):
                k = "dma"; R |= set(allsrc(0)); R.add("m0")
            else:
                k = "vml"; W |= set(ex(0)); R |= set(allsrc(1))
        elif op.startswith("buffer_store") or op.startswith("global_store"):
            k = "vms"; R |= set(allsrc(0))
            self.wide = ("x3" in op or "x4" in op)
        elif op.startswith("buffer_atomic") or op.startswith("global_atomic"):
            k = "vms"; R |= set(allsrc(0))
        elif op.startswith("s_load") or op.startswith("s_memtime") or op.startswith("s_memrealtime"):
            k = "smem"; W |= set(ex(0)); R |= set(allsrc(1))
        elif op in ("s_waitcnt", "s_nop", "s_barrier", "s_endpgm", "s_setprio", "s_sleep"):
            k = {"s_waitcnt": "wait", "s_nop": "nop", "s_barrier": "barrier", "s_endpgm": "end"}.get(op, "salu")
        elif op.startswith("s_cbranch") or op == "s_branch":
            k = "branch"
            if "vcc" in op: R.add("vcc")
            if "exec" in op: R.add("exec")
            if "scc" in op: R.add("scc")
        elif op.startswith("s_cmp"):
            k = "salu"; R |= set(allsrc(0)); W.add("scc")
        elif op.startswith("s_"):
            k = "salu"; W |= set(ex(0)); R |= set(allsrc(1))
            if "saveexec" in op: W.add("exec"); R.add("exec")
            if op.startswith("s_cselect") or op.startswith("s_addc") or op.startswith("s_subb"): R.add("scc")
            if not op.startswith(("s_mov", "s_cselect", "s_getpc", "s_mul_i32", "s_mul_hi")): W.add("scc")
        else:
            raise ValueError("cannot classify: " + text)
        self.kind = k
        self.rd = R; self.wr = W
        self.size = None
    def __repr__(self): return self.text

class Emitter:
    def __init__(self, name):
        self.name = name
        self.out = []
        self.vm = []
        self.lg = []
        self.pos = 0
        self.last = {}
        self.lastC = {}
        self.laststore = {}
        self.lastop = {}
        self.nops = 0
        self.waits = 0
        self.nins = 0
        self.log = None
    def raw(self, text): self.out.append(text)
    def comment(self, text): self.out.append("    ; " + text)
    def label(self, name):
        self.out.append(name + ":")
    def snapshot(self):
        import copy
        return copy.deepcopy((self.vm, self.lg, self.pos, self.last, self.lastC, self.laststore))
    def restore(self, s):
        import copy
        (self.vm, self.lg, self.pos, self.last, self.lastC, self.laststore) = copy.deepcopy(s)
    def merge(self, states):
        P = max(s[2] for s in states)
        q0 = (states[0][0], states[0][1])
        for s in states: assert (s[0], s[1]) == q0, "queues differ at join"
        last, lastC, lastst = {}, {}, {}
        for (vm, lg, pos, l, lc, ls) in states:
            d = P - pos
            for r, lst in l.items():
                last.setdefault(r, []).extend((p + d, k, ps, dD) for (p, k, ps, dD) in lst)
            for r, (p, ps) in lc.items():
                if r not in lastC or lastC[r][0] < p + d: lastC[r] = (p + d, ps)
            for r, p in ls.items():
                lastst[r] = max(lastst.get(r, -99), p + d)
        import copy
        self.vm, self.lg = copy.deepcopy(q0)
        self.pos, self.last, self.lastC, self.laststore = P, last, lastC, lastst
    def settle(self):
        self.last = {}; self.lastC = {}; self.laststore = {}
    def _emit_wait(self, vmn, lgn):
        parts = []
        if vmn is not None:
            assert vmn <= 63
            parts.append(f"vmcnt({vmn})")
            del self.vm[:max(0, len(self.vm) - vmn)]
        if lgn is not None:
            assert lgn <= 15, "lgkmcnt overflow"
            parts.append(f"lgkmcnt({lgn})")
            del self.lg[:max(0, len(self.lg) - lgn)]
        self.out.append("    s_waitcnt " + " ".join(parts))
        self.pos += 1; self.waits += 1; self.nins += 1
    def _need(self, rd, wr):
        vmn = None
        wr_reg = set(x for x in wr if not x.startswith("L:"))
        for i, (w, r) in enumerate(self.vm):
            if (w & rd) or (w & wr_reg) or (r & wr):
                n = len(self.vm) - 1 - i
                vmn = n if vmn is None else min(vmn, n)
        lgn = None
        anys = any(s for (_, _, s) in self.lg)
        for i, (w, r, s) in enumerate(self.lg):
            if (w & rd) or (w & wr_reg) or (r & wr):
                n = 0 if anys else len(self.lg) - 1 - i
                lgn = n if lgn is None else min(lgn, n)
        if lgn is not None and lgn > 15: lgn = 15
        return vmn, lgn
    def waitfor(self, rd=(), wr=()):
        rd = set(x for t in rd for x in (_expand(t) or [t])); wr = set(x for t in wr for x in (_expand(t) or [t]))
        vmn, lgn = self._need(rd, wr)
        if vmn is not None or lgn is not None:
            self._emit_wait(vmn, lgn)
            return True
        return False
    def wait(self, vm=None, lgkm=None):
        if vm is not None and len(self.vm) <= vm: vm = None if False else vm
        self._emit_wait(vm, lgkm)
    def wait_all(self):
        vmn = 0 if self.vm else None; lgn = 0 if self.lg else None
        if vmn is not None or lgn is not None: self._emit_wait(vmn, lgn)
    def _hazard(self, X):
        need = 0
        def req(p, n):
            nonlocal need
            need = max(need, p + n + 1)
        isv = X.kind in ("valu", "trans")
        for r in X.rd | X.wr:
            for (p, k, ps, dD) in self.last.get(r, ()):
                if k == "mfma":
                    big = {2: 5, 4: 8, 8: 12}[ps]
                    if X.kind == "mfma":
                        if r in X.srcAB: req(p, big)
                        if r in X.srcC or r in X.dstD:
                            same_op = self.lastop.get(r) == X.op
                            if (X.srcC == dD and same_op) or (not X.srcC and X.dstD == dD): pass
                            elif X.srcC == dD: req(p, {2: 4, 4: 6, 8: 10}[ps])
                            elif r in X.srcC: req(p, {2: 4, 4: 6, 8: 10}[ps])
                            elif r in X.dstD and X.dstD != dD: req(p, {2: 4, 4: 6, 8: 10}[ps])
                    else:
                        req(p, big)
                elif k in ("valu", "trans"):
                    if isinstance(dD, str) and dD.startswith("v_dot") and X.op != dD: req(p, 3)
                    if r in X.rd:
                        if X.kind == "mfma": req(p, 2)
                        if k == "trans" and isv: req(p, 1)
                        if X.op.startswith("v_permlane"): req(p, 2)
                        if X.op.startswith(("v_readfirstlane", "v_readlane")) and r[0] in "va": req(p, 1)
                        if "dpp" in X.text or "row_" in X.text: req(p, 2)
                        if r[0] == "s" or r == "vcc":
                            if isv: req(p, 2)
                            if X.kind in ("vml", "vms", "dma"): req(p, 5)
                            if X.kind in ("salu", "branch"): req(p, 3)
                        if r == "exec": req(p, 5)
                elif k == "salu":
                    if r == "m0" and X.kind == "dma": req(p, 1)
                    if r == "exec" and X.kind == "mfma": req(p, 4)
        if isv or X.kind in ("dsr", "vml"):
            for r in X.wr:
                if r in self.lastC:
                    p, ps = self.lastC[r]
                    req(p, {2: 1, 4: 3, 8: 7}[ps])
                if r in self.laststore:
                    req(self.laststore[r], 2)
        return need
    def e(self, text, rd=(), wr=(), note=None):
        X = Ins(text, rd, wr, note)
        if X.kind not in ("wait",):
            vmn, lgn = self._need(X.rd, X.wr)
            if vmn is not None or lgn is not None: self._emit_wait(vmn, lgn)
        need = self._hazard(X)
        gap = need - (self.pos + 1)
        while gap > 0:
            n = min(gap, 16)
            self.out.append(f"    s_nop {n-1}")
            self.pos += n; gap -= n; self.nops += 1; self.nins += 1
            if self.log is not None: self.log.append(("nop", n, text))
        self.pos += 1
        self.nins += 1
        self.out.append("    " + text)
        if X.kind == "nop":
            self.pos += int(text.split()[1])
        if X.kind == "wait":
            m = re.search(r"vmcnt\((\d+)\)", text)
            if m: del self.vm[:max(0, len(self.vm) - int(m.group(1)))]
            m = re.search(r"lgkmcnt\((\d+)\)", text)
            if m: del self.lg[:max(0, len(self.lg) - int(m.group(1)))]
        if X.kind in ("vml", "dma", "vms"):
            self.vm.append((set(X.wr), set(r for r in X.rd if r.startswith("L:"))))
            assert len(self.vm) <= 63, "too many outstanding vm ops"
        if X.kind in ("dsr", "dsw", "smem"):
            self.lg.append((set(X.wr), set(r for r in X.rd if r.startswith("L:")), X.kind == "smem"))
        for r in X.wr:
            if X.kind in ("mfma", "valu", "trans", "salu"):
                self.last[r] = [(self.pos, X.kind, X.passes, X.op if X.op.startswith("v_dot") else X.dstD)] + ([t for t in self.last.get(r, ()) if t[1] == "mfma" and X.kind == "mfma" and self.pos - t[0] < 20] if False else [])
            else:
                self.last.pop(r, None)
        if X.kind == "mfma":
            for r in X.srcC: self.lastC[r] = (self.pos, X.passes)
            for r in X.dstD: self.lastop[r] = X.op
        if X.kind == "vms" and X.wide:
            for r in X.rd: self.laststore[r] = self.pos
        return X
    def text(self): return "\n".join(self.out) + "\n"

def vr(a, n=1): return f"v{a}" if n == 1 else f"v[{a}:{a+n-1}]"
def ar(a, n=1): return f"a{a}" if n == 1 else f"a[{a}:{a+n-1}]"
def sr(a, n=1): return f"s{a}" if n == 1 else f"s[{a}:{a+n-1}]"
```

```python
from asmgen import *
from layout import *

MF = "v_mfma_f32_16x16x32_bf16"
MF16 = "v_mfma_f32_16x16x16_bf16"
NSLOT = 9
WRING = NSLOT * 3072
HB = 4 * WRING
XB = HB + 18432
SB = XB + 18432
STX = SB + 12288
LDS1 = STX + 1536
sX, sWQ, sWO, sWS = 4, 8, 12, 16
sW, sWB, sN0, sT = 20, 21, 22, 23
sTMP = 24
sMASK = 40
sDBG = 48
vL, vI, vG = 250, 251, 252
vWq = [240, 241, 242]; vWo = [243, 244, 245]
vTR, vTOA, vTOB = 246, 247, 248
vH = 249
aH = lambda T, ks: (T * 6 + ks) * 4
aWF = lambda buf, nt: 72 + buf * 12 + nt * 4

def gen_k1(stamps=False, X=None):
    X = X or {}
    E = Emitter("k1"); e = E.e
    nstamp = [0]; gen_k1.stamp_names = []
    def stamp(name, fine=None):
        if not stamps: return
        if fine is not None and X.get('fine') != fine: return
        if X.get('fine') and fine is None and name not in ('entry', 'end') and name not in X.get('keep', ()): return
        k = nstamp[0]; nstamp[0] += 1
        e(f"s_memtime s[{50+2*k}:{51+2*k}]"); gen_k1.stamp_names.append(name)
    E.raw(".globl k1_kernel\n.p2align 8\n.type k1_kernel,@function\nk1_kernel:")
    e("s_cmp_ge_u32 s2, 256"); e("s_cbranch_scc1 K1_EXIT")
    stamp("entry")
    if stamps: e("s_memrealtime s[96:97]")
    e("s_cmp_ge_u32 s2, 216"); e("s_cbranch_scc1 K1_SIDE")
    main_snap = None
    e(f"s_load_dwordx2 s[{sX}:{sX+1}], s[0:1], 0")
    e(f"s_load_dwordx2 s[{sWQ}:{sWQ+1}], s[0:1], 8")
    e(f"s_load_dwordx2 s[{sWO}:{sWO+1}], s[0:1], 16")
    e(f"s_load_dwordx2 s[{sWS}:{sWS+1}], s[0:1], 56")
    t0, t1, t2, t3 = 230, 231, 232, 233
    e(f"v_lshrrev_b32 v{t0}, 6, v0")
    e(f"v_and_b32 v{vL}, 63, v0")
    e(f"v_readfirstlane_b32 s{sW}, v{t0}")
    e(f"v_and_b32 v{vI}, 15, v{vL}")
    e(f"v_lshrrev_b32 v{vG}, 4, v{vL}")
    e(f"v_lshlrev_b32 v{vH}, 4, v{vL}")
    if X.get('pfc', 1):
        e("s_getpc_b64 s[88:89]")
        E.label("K1_PC")
        e("s_sub_u32 s88, s88, K1_PC-k1_kernel"); e("s_subb_u32 s89, s89, 0")
        e("s_and_b32 s89, s89, 0xffff"); e("s_mov_b32 s90, K1_CODE_END-k1_kernel"); e("s_mov_b32 s91, 0x20000")
        e(f"s_lshr_b32 s38, s2, 3"); e(f"s_lshl_b32 s38, s38, 2"); e(f"s_add_u32 s38, s38, s{sW}"); e(f"s_lshl_b32 s38, s38, 1")
        e(f"v_and_b32 v{t1}, 1, v{vL}"); e(f"v_add_u32 v{t1}, s38, v{t1}"); e(f"v_lshlrev_b32 v{t1}, 7, v{t1}")
        e(f"buffer_load_dword a251, v{t1}, s[88:91], 0 offen")
    e(f"s_mul_i32 s{sN0}, s2, 6")
    e(f"s_min_u32 s{sT}, s{sW}, 2")
    e(f"s_mul_i32 s{sWB}, s{sW}, {WRING}")
    vX = 234; X0 = 180
    e(f"v_and_b32 v{t0}, 7, v{vI}")
    e(f"s_mov_b32 s24, {XFS}")
    e(f"v_mul_lo_u32 v{t0}, v{t0}, s24")
    e(f"v_lshrrev_b32 v{t1}, 3, v{vI}")
    e(f"v_mul_u32_u24 v{t1}, 384, v{t1}")
    e(f"v_lshl_add_u32 v{t1}, v{vG}, 4, v{t1}")
    e(f"v_add_u32 v{vX}, v{t0}, v{t1}")
    e(f"s_lshl_b32 s37, s{sT}, 1"); e(f"s_add_u32 s37, s37, s{sN0}"); e(f"s_mul_i32 s37, s37, 384")
    E.waitfor(rd=[f"s[{sX}:{sX+1}]"])
    stamp("karg", 'front')
    def mksrd(b_, n):
        e(f"s_and_b32 s{b_+1}, s{b_+1}, 0xffff"); e(f"s_mov_b32 s{b_+2}, {n}"); e(f"s_mov_b32 s{b_+3}, 0x20000")
    srdX, srdWQ, srdWO, srdWS = (f"s[{b_}:{b_+3}]" for b_ in (sX, sWQ, sWO, sWS))
    mksrd(sX, T * XFS); mksrd(sWQ, 221184); mksrd(sWO, 73728); mksrd(sWS, WS_END)
    ADDR = []
    real_e = e
    e = lambda txt, **kw: ADDR.append((txt, kw))
    e(f"s_mov_b32 s26, 0x2aaaaaab")
    e(f"s_mul_i32 s27, s{sW}, 96")
    for k in range(3):
        e(f"v_add_u32 v{t0}, {64*k}, v{vL}")
        e(f"v_mul_hi_u32 v{t1}, v{t0}, s26")
        e(f"v_mul_u32_u24 v{t2}, 6, v{t1}")
        e(f"v_sub_u32 v{t2}, v{t0}, v{t2}")
        e(f"v_lshlrev_b32 v{t2}, 4, v{t2}")
        e(f"v_add_u32 v{t2}, s27, v{t2}")
        if k: e(f"v_subrev_u32 v{t2}, {1024*k}, v{t2}")
        e(f"v_mul_u32_u24 v{t3}, 384, v{t1}")
        e(f"v_add_u32 v{vWo[k]}, v{t3}, v{t2}")
        e(f"v_and_b32 v{t0}, 0x13, v{t1}")
        e(f"v_and_b32 v{t3}, 4, v{t1}")
        e(f"v_lshl_or_b32 v{t0}, v{t3}, 1, v{t0}")
        e(f"v_and_b32 v{t3}, 8, v{t1}")
        e(f"v_lshrrev_b32 v{t3}, 1, v{t3}")
        e(f"v_or_b32 v{t0}, v{t0}, v{t3}")
        e(f"v_mul_u32_u24 v{t0}, 1152, v{t0}")
        e(f"v_add_u32 v{vWq[k]}, v{t0}, v{t2}")
    nwaddr = len(ADDR)
    def slab_items(s):
        M, ks = s // 6, s % 6; slot = s % NSLOT
        so = 28 if s & 1 else 35
        def setup_a(): e(f"s_mov_b32 s{so}, {ks*32*1152 + M*384 if M < 3 else ks*32*384}")
        def setup(): e(f"s_add_u32 m0, s{sWB}, {slot*3072}")
        def d(k):
            if M < 3: return lambda: e(f"buffer_load_dwordx4 v{vWq[k]}, {srdWQ}, s{so} offen offset:{k*1024} lds", wr=[f"L:r{slot}"])
            return lambda: e(f"buffer_load_dwordx4 v{vWo[k]}, {srdWO}, s{so} offen offset:{k*1024} lds", wr=[f"L:r{slot}"])
        return [setup, setup_a, d(0), d(1), d(2)]
    def slab_dma(s):
        for f in slab_items(s): f()
    e(f"v_lshrrev_b32 v{t0}, 1, v{vG}"); e(f"v_lshlrev_b32 v{t0}, 4, v{t0}")
    e(f"v_and_b32 v{t1}, 1, v{vG}"); e(f"v_lshl_add_u32 v{t0}, v{t1}, 2, v{t0}")
    e(f"v_lshrrev_b32 v{t1}, 2, v{vI}"); e(f"v_add_u32 v{t0}, v{t0}, v{t1}")
    e(f"v_mul_u32_u24 v{t0}, 96, v{t0}")
    e(f"v_and_b32 v{t2}, 3, v{vI}")
    e(f"v_lshl_add_u32 v{t0}, v{t2}, 3, v{t0}")
    e(f"v_add_u32 v{vTR}, s{sWB}, v{t0}")
    e(f"v_lshl_add_u32 v{t0}, v{vG}, 2, v{t1}")
    e(f"v_mul_u32_u24 v{t0}, 96, v{t0}")
    e(f"v_add_u32 v{t0}, s{sWB}, v{t0}")
    e(f"v_lshl_add_u32 v{vTOA}, v{t2}, 4, v{t0}")
    e(f"v_lshl_add_u32 v{vTOB}, v{t2}, 3, v{t0}")
    e(f"v_add_u32 v{vTOB}, 64, v{vTOB}")
    e(f"v_lshrrev_b32 v{t0}, 1, v{vG}"); e(f"v_lshrrev_b32 v{t1}, 3, v{vI}")
    e(f"v_cmp_eq_u32 s[{sMASK}:{sMASK+1}], v{t0}, v{t1}")
    vXR4, vXR2 = 228, 229
    c4, c2 = 226, 227
    e(f"s_mul_i32 s24, s{sW}, 6")
    e(f"v_add_u32 v{c4}, s24, v{vG}")
    def xaddr(dst, c16):
        e(f"v_lshrrev_b32 v{t2}, 2, v{c16}"); e(f"v_lshlrev_b32 v{t2}, 10, v{t2}")
        e(f"v_and_b32 v{t3}, 3, v{c16}"); e(f"v_lshl_add_u32 v{t3}, v{t3}, 4, v{vI}")
        e(f"v_lshl_add_u32 v{dst}, v{t3}, 4, v{t2}"); e(f"v_add_u32 v{dst}, {XB}, v{dst}")
    xaddr(vXR4, c4)
    e(f"v_lshrrev_b32 v{t1}, 1, v{vG}"); e(f"s_add_u32 s24, s24, 4"); e(f"v_add_u32 v{c2}, s24, v{t1}")
    xaddr(vXR2, c2)
    e(f"v_and_b32 v{t2}, 1, v{vG}"); e(f"v_lshl_add_u32 v{vXR2}, v{t2}, 3, v{vXR2}")
    RS = 400
    LATE = []
    real2 = e
    e = lambda txt, **kw: LATE.append(txt)
    vA4, vA2, vAS, vOL, vOG = 212, 213, 214, 215, 216
    u0, u1, u2, u3, u4 = 144, 145, 146, 147, 148
    e(f"v_mul_u32_u24 v{u0}, {RS}, v{vI}"); e(f"v_add_u32 v{u0}, s33, v{u0}")
    e(f"v_lshl_add_u32 v{vA4}, v{c4}, 4, v{u0}"); e(f"v_lshl_add_u32 v{vA2}, v{c2}, 4, v{u0}")
    e(f"v_and_b32 v{u1}, 1, v{vG}"); e(f"v_lshl_add_u32 v{vA2}, v{u1}, 3, v{vA2}")
    e(f"v_lshrrev_b32 v{u0}, 3, v{vL}"); e(f"v_and_b32 v{u1}, 7, v{vL}")
    e(f"v_min_u32 v{u2}, 5, v{u0}")
    e(f"v_mul_u32_u24 v{u3}, {8*RS}, v{u2}"); e(f"v_lshl_add_u32 v{u3}, v{u1}, 4, v{u3}"); e(f"v_add_u32 v{vOL}, s34, v{u3}")
    e(f"v_add_u32 v{u2}, s{sN0}, v{u2}")
    e(f"v_lshrrev_b32 v{u3}, 5, v{u2}"); e(f"v_mul_u32_u24 v{u3}, {CH}, v{u3}")
    e(f"v_and_b32 v{u4}, 31, v{u2}"); e(f"v_lshl_add_u32 v{u3}, v{u4}, 7, v{u3}")
    e(f"v_and_b32 v{u4}, 6, v{u2}"); e(f"v_xor_b32 v{u4}, v{u4}, v{u1}"); e(f"v_lshl_add_u32 v{vOG}, v{u4}, 4, v{u3}")
    e(f"v_lshlrev_b32 v{vAS}, 3, v{u2}")
    e(f"v_mov_b32 v{u2}, 0x7ffffff0")
    e(f"v_cmp_lt_u32 vcc, 5, v{u0}"); e(f"v_cndmask_b32 v{vOG}, v{vOG}, v{u2}, vcc"); e(f"v_cndmask_b32 v{vAS}, v{vAS}, v{u2}, vcc")
    e(f"v_cmp_ne_u32 vcc, 0, v{u1}"); e(f"v_cndmask_b32 v{vAS}, v{vAS}, v{u2}, vcc")
    e = real2
    e(f"s_mov_b32 s33, {XB}")
    e(f"s_mul_i32 s34, s{sW}, {2*RS}"); e(f"s_add_u32 s34, s34, {XB}")
    e(f"s_mul_i32 s42, s{sW}, {2*FS}")
    for k in range(1, 6): e(f"s_add_u32 s{42+k}, s42, {(k//3)*FS + (k%3)*4096}")
    e(f"s_mul_i32 s31, s{sW}, {2*N*8}"); e(f"s_add_u32 s31, s31, {WS_STAT}"); e(f"s_add_u32 s32, s31, {N*8}")
    vHB, vSW, vSR, vOW, vS1, vS2, vSTR = 235, 236, 237, [238, 239, 253], 221, 222, 223
    vPWr, vPRd = 210, 211
    e(f"v_add_u32 v{vHB}, {HB}, v{vH}")
    e(f"s_mul_i32 s24, s{sW}, 3072"); e(f"s_add_u32 s24, s24, {SB}")
    e(f"v_add_u32 v{vSW}, s24, v{vH}")
    e(f"s_lshl_b32 s24, s{sT}, 10"); e(f"s_add_u32 s24, s24, {SB}"); e(f"v_add_u32 v{vSR}, s24, v{vH}")
    e(f"v_lshlrev_b32 v{vPRd}, 3, v{vL}"); e(f"v_add_u32 v{vPRd}, {STX}, v{vPRd}")
    e(f"s_lshl_b32 s24, s{sT}, 9"); e(f"v_add_u32 v{vPWr}, s24, v{vPRd}")
    for nt in range(3):
        e(f"s_mul_i32 s24, s{sW}, 3"); e(f"s_add_u32 s24, s24, {nt}")
        e(f"s_lshr_b32 s25, s24, 1"); e(f"s_lshl_b32 s25, s25, 10"); e(f"s_and_b32 s24, s24, 1"); e(f"s_lshl_b32 s24, s24, 3")
        e(f"s_add_u32 s24, s24, s25"); e(f"s_add_u32 s24, s24, {HB}")
        e(f"v_add_u32 v{vOW[nt]}, s24, v{vH}")
    e(f"v_lshlrev_b32 v{vSTR}, 4, v{vI}"); e(f"v_add_u32 v{vSTR}, {STX}, v{vSTR}")
    e(f"s_lshl_b32 s24, s{sW}, 2")
    e(f"v_lshl_add_u32 v{vS1}, v{vG}, 8, v{vSTR}"); e(f"v_add_u32 v{vS1}, s24, v{vS1}")
    e(f"v_and_b32 v{t0}, 1, v{vG}"); e(f"v_lshl_add_u32 v{vS2}, v{t0}, 8, v{vSTR}"); e(f"v_add_u32 v{vS2}, s24, v{vS2}")
    e(f"v_add_u32 v{vS2}, 1024, v{vS2}")
    e(f"s_mul_i32 s24, s{sT}, 6144")
    e(f"s_add_u32 s25, s24, {HB}"); e(f"s_add_u32 s24, s24, {XB}")
    e(f"s_cmp_eq_u32 s{sW}, 3"); e(f"s_cselect_b32 s24, {SB}, s24")
    vHW, vXW = 224, 225
    e(f"v_add_u32 v{vHW}, s25, v{vH}"); e(f"v_add_u32 v{vXW}, s24, v{vH}")
    import struct
    cs = struct.unpack("<I", struct.pack("<f", SCALE_LOG2E))[0]
    e(f"s_mov_b32 s29, {hex(cs)}"); e(f"s_mov_b32 s36, 0x3baaaaab")
    ONE = 76
    e(f"v_mov_b32 v{ONE}, 0x3f803f80")
    for k in range(1, 4): e(f"v_mov_b32 v{ONE+k}, v{ONE}")
    e("v_mov_b32 v80, 0"); e("v_mov_b32 v81, 0")
    e = real_e
    pend = []
    def pump(n=1):
        for _ in range(n):
            if not pend: return
            while pend[0].__name__.startswith("setup"): pend.pop(0)()
            pend.pop(0)()
    def scalar_ahead(pumping):
        if pend and pend[0].__name__.startswith("setup"): pend.pop(0)()
    e(f"s_cmp_eq_u32 s{sW}, 3"); e("s_cbranch_scc1 K1_LOADER")
    snap0 = E.snapshot()
    for ks in range(6):
        e(f"buffer_load_dwordx4 {vr(X0+4*ks,4)}, v{vX}, {srdX}, s25x offen offset:{ks*64} {X.get('xnt', '')}".replace("s25x", "s37"))
    stamp("xiss")
    for (txt, kw) in ADDR[:nwaddr]: e(txt, **kw)
    npre = X.get('npre', 2)
    nln = X.get('nln', 4)
    for s_ in range(npre): slab_dma(s_)
    stamp("iss1")
    for (txt, kw) in ADDR[nwaddr:]: e(txt, **kw)
    for s_ in range(npre, nln): pend.extend(slab_items(s_))
    stamp("addr")
    F = lambda k: 24 + k
    SU, SQ, TM = 72, 80, 82
    E.waitfor(rd=[vr(X0, 4)])
    stamp("xin")
    for ks in range(6):
        e(f"{MF} {vr(SU,4)}, {vr(ONE,4)}, {vr(X0+4*ks,4)}, {'0' if ks == 0 else vr(SU,4)}")
        for r in range(4):
            reg = X0 + 4 * ks + r
            e(f"v_dot2c_f32_bf16 v{SQ+(r&1)}, v{reg}, v{reg}")
    ln = []
    L_ = lambda txt: ln.append(txt)
    L_(f"v_add_f32 v{SQ}, v{SQ}, v{SQ+1}")
    for r in range(4): L_(f"v_lshlrev_b32 v{F(2*r)}, 16, v{X0+r}");
    L_(f"v_mov_b32 v{TM}, v{SQ}");
    for r in range(4): L_(f"v_and_b32 v{F(2*r+1)}, 0xffff0000, v{X0+r}")
    L_(f"v_permlane16_swap_b32 v{SQ}, v{TM}"); L_(f"v_add_f32 v{SQ}, v{SQ}, v{TM}")
    L_(f"v_mul_f32 v{SU}, 0x3baaaaab, v{SU}")
    L_(f"v_mov_b32 v{TM}, v{SQ}")
    L_(f"v_lshlrev_b32 v{F(8)}, 16, v{X0+4}"); L_(f"v_and_b32 v{F(9)}, 0xffff0000, v{X0+4}")
    L_(f"v_permlane32_swap_b32 v{SQ}, v{TM}"); L_(f"v_add_f32 v{SQ}, v{SQ}, v{TM}")
    L_(f"v_mul_f32 v{TM}, v{SU}, v{SU}")
    L_(f"v_fma_f32 v{SQ}, v{SQ}, s36, -v{TM}")
    L_(f"v_max_f32 v{SQ}, 0, v{SQ}"); L_(f"v_add_f32 v{SQ}, 0x3727c5ac, v{SQ}")
    L_(f"v_rsq_f32 v{SQ}, v{SQ}")
    for r in range(5, 8):
        L_(f"v_lshlrev_b32 v{F(2*r)}, 16, v{X0+r}"); L_(f"v_and_b32 v{F(2*r+1)}, 0xffff0000, v{X0+r}")
    L_(f"v_mul_f32 v{TM}, v{SU}, v{SQ}"); L_(f"v_sub_f32 v{TM}, 0, v{TM}")
    HP = 84
    for r in range(24):
        if r >= 8: L_(f"v_lshlrev_b32 v{F(2*r)}, 16, v{X0+r}"); L_(f"v_and_b32 v{F(2*r+1)}, 0xffff0000, v{X0+r}")
        L_(f"v_pk_fma_f32 {vr(F(2*r),2)}, {vr(F(2*r),2)}, {vr(SQ,2)}, {vr(TM,2)} op_sel_hi:[1,0,0]")
        L_(f"v_cvt_pk_bf16_f32 v{HP+r}, v{F(2*r)}, v{F(2*r+1)}")
        if (r & 3) == 3: L_(f"ds_write_b128 v{vHW}, {vr(HP+r-3,4)} offset:{(r>>2)*1024}")
    pace = X.get('pace', 12)
    xws = [f"ds_write_b128 v{vXW}, {vr(X0+4*ks,4)} offset:{ks*1024}" for ks in range(6)]
    xstep = X.get('xstep', 8)
    for k, txt in enumerate(ln):
        e(txt)
        if (k + 1) % xstep == 0 and xws: e(xws.pop(0))
        if (k + 1) % pace == 0: pump()
    for txt in xws: e(txt)
    while pend: pump()
    stamp("lnend", 'ln')
    E.wait(lgkm=0)
    e("s_branch K1_JOIN")
    snapA = E.snapshot()
    E.label("K1_LOADER"); E.restore(snap0)
    vQ1, vQ2 = 4, 5
    e(f"s_lshr_b32 s38, s2, 3")
    def wpf():
        if X.get('pf', 1):
            e(f"s_lshl_b32 s39, s38, 6")
            e(f"v_add_u32 v{vQ1}, s39, v{vL}"); e(f"v_lshlrev_b32 v{vQ1}, 7, v{vQ1}")
            e(f"buffer_load_dword a255, v{vQ1}, {srdWQ}, 0 offen")
            e(f"s_mul_i32 s39, s38, 22")
            e(f"v_min_u32 v{vQ2}, 21, v{vL}"); e(f"v_add_u32 v{vQ2}, s39, v{vQ2}"); e(f"v_lshlrev_b32 v{vQ2}, 7, v{vQ2}")
            e(f"buffer_load_dword a254, v{vQ2}, {srdWO}, 0 offen")
    if X.get('pffirst', 0): wpf()
    if X.get('fine') == 'pf':
        stamp("pf_iss", 'pf'); E.wait(vm=3); stamp("pf_c", 'pf'); E.wait(vm=2); stamp("pf_1", 'pf'); E.wait(vm=0); stamp("pf_all", 'pf'); E.wait(lgkm=0)
    for (txt, kw) in ADDR[:nwaddr]: e(txt, **kw)
    for s_ in range(2): slab_dma(s_)
    if not X.get('pffirst', 0): wpf()
    slab_dma(2)
    for (txt, kw) in ADDR[nwaddr:]: e(txt, **kw)
    stamp("l_addr", 'ln')
    for s_ in range(3, nln): slab_dma(s_)
    stamp("l_done", 'ln')
    if E.lg: E.wait(lgkm=0)
    snapB = E.snapshot()
    def dmaonly(sn):
        vm = [x for x in sn[0] if any(r.startswith("L:r") for r in x[0])]
        return (vm,) + tuple(sn[1:])
    snapA, snapB = dmaonly(snapA), dmaonly(snapB)
    n_ = min(len(snapA[0]), len(snapB[0]))
    snapA = (snapA[0][-n_:],) + snapA[1:]; snapB = (snapB[0][-n_:],) + snapB[1:]
    E.merge([snapA, snapB])
    E.label("K1_JOIN")
    e("s_barrier")
    stamp("ln1")
    nxt_slab = [nln]
    def queue_upto(n):
        while nxt_slab[0] <= min(n, 23):
            pend.extend(slab_items(nxt_slab[0])); nxt_slab[0] += 1
    def slab_reads(s, buf):
        M = s // 6; slot = s % NSLOT; out = []
        for nt in range(3):
            for hh in range(2):
                if M < 3: adr, off = vTR, slot*3072 + hh*768 + nt*32
                elif nt < 2: adr, off = vTOA, slot*3072 + hh*1536 + nt*8
                else: adr, off = vTOB, slot*3072 + hh*1536
                out.append(lambda adr=adr, off=off, nt=nt, hh=hh: e(f"ds_read_b64_tr_b16 {ar(aWF(buf,nt)+2*hh,2)}, v{adr} offset:{off}", rd=[f"L:r{slot}"]))
        return out
    QA = lambda nt, Tt: (nt * 3 + Tt) * 4
    KA = lambda nt, Tt: 36 + (nt * 3 + Tt) * 4
    VA = lambda Tt, nt: 72 + (Tt * 3 + nt) * 4
    YA = lambda nt, Tt: 108 + (Tt * 3 + nt) * 4
    hread = lambda Tt, ks: (lambda: e(f"ds_read_b128 {ar(aH(Tt,ks),4)}, v{vHB} offset:{(Tt*6+ks)*1024}"))
    def gemm(M, valu=None, mem=None, cinit=False, stream_b=False, hook=None):
        valu = valu if (hook and valu is not None) else list(valu or []); mem = list(mem or [])
        for ks in range(6):
            s = M * 6 + ks; buf = s & 1
            nxt = slab_reads(s + 1, (s + 1) & 1) if s + 1 < 24 else []
            la = X.get('la', 5) if s < X.get('la2s', 12) else X.get('la2', 5)
            queue_upto(min(s + la, s + NSLOT - 1 if s >= 1 else NSLOT - 1))
            hb = [hread(Tt, ks + 1) for Tt in range(3)] if (stream_b and ks < 5) else []
            if M < 2: stamp(f"s{s}", 'slab')
            if M >= 2: stamp(f"s{s}", 'slab2')
            k = 0
            for nt in range(3):
                for Tt in range(3):
                    W = ar(aWF(buf, nt), 4)
                    if M == 0: d, a, b = vr(QA(nt, Tt), 4), W, ar(aH(Tt, ks), 4)
                    elif M == 1: d, a, b = vr(KA(nt, Tt), 4), W, ar(aH(Tt, ks), 4)
                    elif M == 2: d, a, b = vr(VA(Tt, nt), 4), ar(aH(Tt, ks), 4), W
                    else: d, a, b = vr(YA(nt, Tt), 4), W, ar(aH(Tt, ks), 4)
                    e(f"{MF} {d}, {a}, {b}, {'0' if (ks == 0 and not cinit) else d}")
                    if k == 2: E.waitfor(rd=[ar(aWF(buf, 1), 4)])
                    if k == 5: E.waitfor(rd=[ar(aWF(buf, 2), 4)])
                    if k == 8 and nxt:
                        rr = [ar(aWF((s + 1) & 1, 0), 4)]
                        if hb: rr += [ar(aH(0, ks + 1), 4), ar(aH(1, ks + 1), 4)]
                        E.waitfor(rd=rr)
                    room = 2
                    pumping = bool(pend) and (k in X.get('pk', (2, 5, 8)) or (len(pend) > 5 and k in (3, 6)))
                    scalar_ahead(pumping)
                    if hook: room -= hook(ks, k, valu)
                    if k < 6 and nxt: nxt[k](); room -= 1
                    if k in (0, 2, 4) and hb: hb[k // 2](); room -= 1
                    if pend and pumping: pump(); room -= 1
                    if room > 0 and mem and k >= 6: mem.pop(0)(); room -= 1
                    while room > 0 and valu:
                        f = valu[0]; c = getattr(f, "cost", 1)
                        if c > room and room < 2: break
                        valu.pop(0)(); room -= c
                    k += 1
        for f in mem: f()
        for f in valu: f()
    V_ = lambda lst, txt, cost=1: lst.append(_mk(txt, cost))
    def _mk(txt, cost):
        f = lambda: e(txt)
        f.cost = cost
        return f
    for f in slab_reads(0, 0)[:2]: f()
    for Tt in range(3): hread(Tt, 0)()
    for f in slab_reads(0, 0)[2:]: f()
    XR = lambda Tt: 144 + 6 * Tt
    xr = []
    for Tt in range(3):
        xr.append(lambda Tt=Tt: e(f"ds_read_b128 {vr(XR(Tt),4)}, v{vXR4} offset:{Tt*6144}"))
        xr.append(lambda Tt=Tt: e(f"ds_read_b64 {vr(XR(Tt)+4,2)}, v{vXR2} offset:{Tt*6144}"))
    fillq = []
    for Tt in range(3):
        for j in range(12):
            raw = XR(Tt) + (j >> 1); d = YA(0, Tt) + j
            if j & 1: V_(fillq, f"v_and_b32 v{d}, 0xffff0000, v{raw}")
            else: V_(fillq, f"v_lshlrev_b32 v{d}, 16, v{raw}")
    def qhook(ks, k, valu):
        if ks == 0 and k >= 6 and xr: xr.pop(0)(); return 1
        if ks == 1 and k >= 6 and xr: xr.pop(0)(); return 1
        return 0
    held = list(fillq); live = []
    def qhook2(ks, k, valu):
        r = qhook(ks, k, valu)
        if ks == 2 and k == 0: valu.extend(held); del held[:]
        return r
    gemm(0, valu=live, stream_b=True, hook=qhook2)
    stamp("q")
    fill = []
    for Tt in range(3):
        for nt in range(3):
            a = QA(nt, Tt)
            V_(fill, f"v_cvt_pk_bf16_f32 v{a}, v{a}, v{a+1}"); V_(fill, f"v_cvt_pk_bf16_f32 v{a+1}, v{a+2}, v{a+3}")
    gemm(1, valu=fill); stamp("k")
    SP = lambda Tt: 144 + 4 * Tt
    queue_upto(11 + X.get('las', 0))
    for nt in range(3):
        for Tt in range(3):
            a = KA(nt, Tt)
            e(f"v_cvt_pk_bf16_f32 v{a}, v{a}, v{a+1}"); e(f"v_cvt_pk_bf16_f32 v{a+1}, v{a+2}, v{a+3}")
            pump()
        for Tt in range(3):
            e(f"{MF16} {vr(SP(Tt),4)}, {vr(KA(nt,Tt),2)}, {vr(QA(nt,Tt),2)}, {'0' if nt == 0 else vr(SP(Tt),4)}")
    for Tt in range(3): e(f"ds_write_b128 v{vSW}, {vr(SP(Tt),4)} offset:{Tt*1024}")
    E.wait(lgkm=0)
    e("s_barrier")
    stamp("spart")
    SR = lambda src: 172 + 4 * src
    for src in range(4): e(f"ds_read_b128 {vr(SR(src),4)}, v{vSR} offset:{src*3072}")
    fill = []
    s0 = SR(0); m = 188; tm = 189; PPW = 190
    for r in range(4):
        V_(fill, f"v_add_f32 v{s0+r}, v{s0+r}, v{SR(1)+r}")
        V_(fill, f"v_add_f32 v{SR(2)+r}, v{SR(2)+r}, v{SR(3)+r}")
    for r in range(4): V_(fill, f"v_add_f32 v{s0+r}, v{s0+r}, v{SR(2)+r}")
    V_(fill, f"v_max3_f32 v{m}, v{s0}, v{s0+1}, v{s0+2}"); V_(fill, f"v_max_f32 v{m}, v{m}, v{s0+3}")
    V_(fill, f"v_mov_b32 v{tm}, v{m}"); V_(fill, f"v_permlane16_swap_b32 v{m}, v{tm}", 2); V_(fill, f"v_max_f32 v{m}, v{m}, v{tm}")
    V_(fill, f"v_mul_f32 v{m}, s29, v{m}")
    for r in range(4): V_(fill, f"v_fma_f32 v{s0+r}, v{s0+r}, s29, -v{m}")
    for r in range(4): V_(fill, f"v_exp_f32 v{s0+r}, v{s0+r}", 2)
    V_(fill, f"v_add_f32 v{m}, v{s0}, v{s0+1}"); V_(fill, f"v_add_f32 v{tm}, v{s0+2}, v{s0+3}"); V_(fill, f"v_add_f32 v{m}, v{m}, v{tm}")
    V_(fill, f"v_mov_b32 v{tm}, v{m}"); V_(fill, f"v_permlane16_swap_b32 v{m}, v{tm}", 2); V_(fill, f"v_add_f32 v{m}, v{m}, v{tm}")
    V_(fill, f"v_rcp_f32 v{m}, v{m}", 2)
    for r in range(4): V_(fill, f"v_mul_f32 v{s0+r}, v{s0+r}, v{m}")
    V_(fill, f"v_cvt_pk_bf16_f32 v{PPW}, v{s0}, v{s0+1}"); V_(fill, f"v_cvt_pk_bf16_f32 v{PPW+1}, v{s0+2}, v{s0+3}")
    V_(fill, f"v_cndmask_b32 v{PPW}, 0, v{PPW}, s[{sMASK}:{sMASK+1}]"); V_(fill, f"v_cndmask_b32 v{PPW+1}, 0, v{PPW+1}, s[{sMASK}:{sMASK+1}]")
    V_(fill, f"ds_write_b64 v{vPWr}, {vr(PPW,2)}")
    fill = [f for f in fill if True]
    PP = lambda Tt: 204 + 2 * Tt
    def vhook(ks, k, valu):
        if ks == 5 and k == 0:
            for f in list(valu): valu.pop(0)()
            E.wait(lgkm=0); e("s_barrier")
            return 0
        if ks == 5 and k in (6, 7, 8):
            e(f"ds_read_b64 {vr(PP(k-6),2)}, v{vPRd} offset:{(k-6)*512}")
            return 1
        return 0
    gemm(2, valu=fill, hook=vhook)
    stamp("v")
    OA = lambda Tt, nt: (Tt * 3 + nt) * 4
    order = [(Tt, nt) for nt in range(3) for Tt in range(3)]
    vpack = []
    for (Tt, nt) in order:
        a = VA(Tt, nt)
        vpack.append([f"v_cvt_pk_bf16_f32 v{a}, v{a}, v{a+1}", f"v_cvt_pk_bf16_f32 v{a+1}, v{a+2}, v{a+3}"])
    opack = []
    for (Tt, nt) in order:
        a = OA(Tt, nt)
        opack.append([f"v_cvt_pk_bf16_f32 v{a}, v{a}, v{a+1}", f"v_cvt_pk_bf16_f32 v{a+1}, v{a+2}, v{a+3}",
                      f"ds_write_b64 v{vOW[nt]}, {vr(a,2)} offset:{Tt*6144}"])
    for j in range(2):
        for x_ in vpack[j]: e(x_)
    for j, (Tt, nt) in enumerate(order):
        e(f"{MF16} {vr(OA(Tt,nt),4)}, {vr(VA(Tt,nt),2)}, {vr(PP(Tt),2)}, 0")
        if j + 2 < 9:
            for x_ in vpack[j + 2]: e(x_)
        elif j >= 7:
            for x_ in opack[j - 7][:2]: e(x_)
    for j in range(9):
        it = opack[j][2:] if j < 2 else opack[j]
        for x_ in it: e(x_)
    E.wait(lgkm=0)
    e("s_barrier")
    stamp("o")
    for Tt in range(3): hread(Tt, 0)()
    gemm(3, valu=[_mk(t_, 1) for t_ in LATE], cinit=True, stream_b=True); stamp("y")
    for Tt in range(3):
        y = YA(0, Tt)
        for p in range(6): e(f"v_cvt_pk_bf16_f32 v{y+p}, v{y+2*p}, v{y+2*p+1}")
        e(f"ds_write_b128 v{vA4}, {vr(y,4)} offset:{Tt*16*RS}")
        e(f"ds_write_b64 v{vA2}, {vr(y+4,2)} offset:{Tt*16*RS}")
    e("v_mov_b32 v60, 0x3f803f80")
    for k in range(4): e(f"v_mov_b32 v{48+k}, 0"); e(f"v_mov_b32 v{24+k}, 0")
    E.wait(lgkm=0)
    e("s_barrier")
    stamp("stat")
    RW = lambda hf, cb: 12 * hf + 4 * cb
    for hf in range(2):
        for cb in range(3): e(f"ds_read_b128 {vr(RW(hf,cb),4)}, v{vOL} offset:{hf*RS + cb*128}")
    SM = lambda hf: 48 + hf; SQ2 = lambda hf: 50 + hf
    E.waitfor(rd=["v[0:3]"]); stamp("t_rd", 'tail')
    for r in range(0, 12, 2):
        for hf in range(2):
            e(f"v_dot2c_f32_bf16 v{SM(hf)}, v{12*hf+r}, v60"); e(f"v_dot2c_f32_bf16 v{SQ2(hf)}, v{12*hf+r}, v{12*hf+r}")
        for hf in range(2):
            e(f"v_dot2c_f32_bf16 v{24+hf}, v{12*hf+r+1}, v60"); e(f"v_dot2c_f32_bf16 v{26+hf}, v{12*hf+r+1}, v{12*hf+r+1}")
    for k in range(4): e(f"v_add_f32 v{48+k}, v{48+k}, v{24+k}")
    stamp("t_dot", 'tail')
    FF = lambda hf, k: 64 + 24 * hf + k
    unp = []
    for hf in range(2):
        for r in range(12):
            unp.append(f"v_lshlrev_b32 v{FF(hf,2*r)}, 16, v{12*hf+r}"); unp.append(f"v_and_b32 v{FF(hf,2*r+1)}, 0xffff0000, v{12*hf+r}")
    for dpp in ("quad_perm:[1,0,3,2]", "quad_perm:[2,3,0,1]", "row_half_mirror"):
        for k in range(4): e(f"v_add_f32_dpp v{48+k}, v{48+k}, v{48+k} {dpp} row_mask:0xf bank_mask:0xf")
        for _ in range(2): e(unp.pop(0))
    MU = lambda hf: 52 + 4 * hf
    for hf in range(2): e(f"v_mul_f32 v{MU(hf)}, 0x3baaaaab, v{SM(hf)}")
    for hf in range(2): e(f"v_mul_f32 v{SM(hf)}, v{MU(hf)}, v{MU(hf)}")
    for hf in range(2): e(f"v_fma_f32 v{SQ2(hf)}, v{SQ2(hf)}, s36, -v{SM(hf)}")
    for hf in range(2): e(f"v_max_f32 v{SQ2(hf)}, 0, v{SQ2(hf)}")
    for hf in range(2): e(f"v_add_f32 v{SQ2(hf)}, 0x3727c5ac, v{SQ2(hf)}")
    for hf in range(2): e(f"v_rsq_f32 v{MU(hf)+2}, v{SQ2(hf)}")
    for _ in range(4): e(unp.pop(0))
    for hf in range(2): e(f"v_mul_f32 v{MU(hf)+1}, v{SQ2(hf)}, v{MU(hf)+2}")
    NM = lambda hf: 60 + 2 * hf
    for hf in range(2): e(f"v_mul_f32 v{NM(hf)}, v{MU(hf)}, v{MU(hf)+2}")
    for hf in range(2): e(f"v_sub_f32 v{NM(hf)}, 0, v{NM(hf)}")
    stamp("t_st", 'tail')
    while len(unp) > 24: e(unp.pop(0))
    for hf in range(2):
        stamp(f"t_n{hf}", 'tail')
        for r in range(12):
            if hf == 0 and unp:
                e(unp.pop(0)); e(unp.pop(0))
            e(f"v_pk_fma_f32 {vr(FF(hf,2*r),2)}, {vr(FF(hf,2*r),2)}, {vr(MU(hf)+2,2)}, {vr(NM(hf),2)} op_sel_hi:[1,0,0]")
            e(f"v_cvt_pk_bf16_f32 v{12*hf+r}, v{FF(hf,2*r)}, v{FF(hf,2*r+1)}")
            if (r & 3) == 3:
                e(f"buffer_store_dwordx4 {vr(12*hf+r-3,4)}, v{vOG}, {srdWS}, s{42+3*hf+(r>>2)} offen {X.get('st', '')}")
        e(f"buffer_store_dwordx2 {vr(MU(hf),2)}, v{vAS}, {srdWS}, s{31+hf} offen {X.get('st', '')}")
    def dump_stamps():
        stamp("end")
        e("s_memrealtime s[98:99]")
        E.wait(lgkm=0)
        e(f"s_lshl_b32 s36, s2, 2"); e(f"s_add_u32 s36, s36, s{sW}"); e(f"s_lshl_b32 s36, s36, 7")
        e(f"s_add_u32 s36, s36, {WS_END + 0x40000}")
        e(f"s_load_dwordx2 s[92:93], s[0:1], 56"); E.wait(lgkm=0)
        e(f"s_and_b32 s93, s93, 0xffff"); e(f"s_mov_b32 s94, 0x1000000"); e(f"s_mov_b32 s95, 0x20000")
        e(f"v_mov_b32 v1, s36")
        for k in range(1, nstamp[0]):
            e(f"s_sub_u32 s36, s{50+2*k}, s50"); e(f"v_mov_b32 v0, s36")
            e(f"buffer_store_dword v0, v1, s[92:95], 0 offen offset:{4*k}")
        e(f"v_mov_b32 v0, s98")
        e(f"buffer_store_dword v0, v1, s[92:95], 0 offen offset:124")
        e(f"v_mov_b32 v0, s96")
        e(f"buffer_store_dword v0, v1, s[92:95], 0 offen offset:120")
    if stamps: dump_stamps()
    e("s_endpgm")
    E.label("K1_SIDE"); E.vm = []; E.lg = []; E.settle()
    sQS, sOS = 8, 12
    e(f"s_load_dwordx2 s[{sQS}:{sQS+1}], s[0:1], 24")
    e(f"s_load_dwordx2 s[{sOS}:{sOS+1}], s[0:1], 32")
    e(f"s_load_dwordx2 s[{sWS}:{sWS+1}], s[0:1], 56")
    e(f"v_lshrrev_b32 v{t0}, 6, v0"); e(f"v_and_b32 v{vL}, 63, v0")
    e(f"v_readfirstlane_b32 s{sW}, v{t0}")
    e(f"v_and_b32 v{vI}, 15, v{vL}"); e(f"v_lshrrev_b32 v{vG}, 4, v{vL}")
    if X.get('pfk2', 1):
        e("s_getpc_b64 s[88:89]")
        E.label("K1_PC2")
        e("s_add_u32 s88, s88, k2_kernel-K1_PC2"); e("s_addc_u32 s89, s89, 0")
        e("s_and_b32 s89, s89, 0xffff"); e("s_mov_b32 s90, K2_CODE_END-k2_kernel"); e("s_mov_b32 s91, 0x20000")
        e(f"s_sub_u32 s24, s2, 216"); e(f"s_lshr_b32 s24, s24, 3"); e(f"s_lshl_b32 s24, s24, 2"); e(f"s_add_u32 s24, s24, s{sW}")
        e(f"s_mul_i32 s24, s24, 12")
        e(f"v_min_u32 v{t1}, 11, v{vL}"); e(f"v_add_u32 v{t1}, s24, v{t1}"); e(f"v_lshlrev_b32 v{t1}, 7, v{t1}")
        e(f"buffer_load_dword a255, v{t1}, s[88:91], 0 offen")
    e(f"s_sub_u32 s24, s2, 216"); e(f"s_and_b32 s26, s24, 7"); e(f"s_lshr_b32 s24, s24, 3"); e(f"s_lshl_b32 s24, s24, 2"); e(f"s_add_u32 s24, s24, s{sW}")
    e(f"s_cmp_ge_u32 s24, 18"); e("s_cbranch_scc1 K1_EXIT")
    e(f"s_lshr_b32 s25, s26, 2")
    e(f"s_mul_i32 s27, s24, 10923"); e(f"s_lshr_b32 s27, s27, 16")
    e(f"s_mul_i32 s28, s27, 6"); e(f"s_sub_u32 s29, s24, s28")
    e(f"s_and_b32 s28, s26, 1"); e(f"s_mul_i32 s28, s28, 3"); e(f"s_add_u32 s28, s28, s27")
    e(f"s_lshr_b32 s27, s26, 1"); e(f"s_and_b32 s27, s27, 1"); e(f"s_mul_i32 s27, s27, 6"); e(f"s_add_u32 s27, s27, s29")
    e(f"s_mul_i32 s26, s27, 21846"); e(f"s_lshr_b32 s26, s26, 16")
    e(f"s_mul_i32 s29, s26, 3"); e(f"s_sub_u32 s29, s27, s29")
    e(f"s_mul_i32 s24, s26, 18"); e(f"s_mul_i32 s27, s28, 3"); e(f"s_add_u32 s24, s24, s27"); e(f"s_add_u32 s24, s24, s29")
    E.waitfor(rd=[f"s[{sQS}:{sQS+1}]"])
    for (b, n) in ((sQS, 221184), (sOS, 73728), (sWS, WS_END)):
        e(f"s_and_b32 s{b+1}, s{b+1}, 0xffff"); e(f"s_mov_b32 s{b+2}, {n}"); e(f"s_mov_b32 s{b+3}, 0x20000")
    srdQS, srdOS = f"s[{sQS}:{sQS+3}]", f"s[{sOS}:{sOS+3}]"
    e(f"s_lshl_b32 s30, s24, 10"); e(f"v_lshlrev_b32 v{vH}, 4, v{vL}")
    e(f"s_cmp_eq_u32 s25, 1"); e("s_cbranch_scc1 K1_SIDE_VO")
    snap = E.snapshot()
    AX = lambda js: js * 4; AY = lambda js: 24 + js * 4; BB = lambda js: 48 + js * 4
    DX, DY = 72, 76
    e(f"s_add_u32 s30, s30, {WS_WQK}")
    e(f"v_lshrrev_b32 v{t0}, 2, v{vI}"); e(f"v_and_b32 v{t1}, 3, v{vI}")
    e(f"v_lshl_add_u32 v{t0}, v{t0}, 3, v{t1}")
    e(f"s_lshl_b32 s31, s28, 5"); e(f"v_add_u32 v{t2}, s31, v{t0}")
    e(f"v_mul_u32_u24 v{t2}, 1152, v{t2}"); e(f"v_lshl_add_u32 v{t2}, v{vG}, 4, v{t2}")
    e(f"v_add_u32 v{t3}, {4*1152}, v{t2}")
    e(f"s_mul_i32 s31, s26, 3"); e(f"s_add_u32 s31, s31, s29")
    e(f"s_lshr_b32 s32, s31, 1"); e(f"s_lshl_b32 s32, s32, 5"); e(f"s_and_b32 s31, s31, 1"); e(f"s_lshl_b32 s31, s31, 2"); e(f"s_add_u32 s31, s31, s32")
    e(f"v_add_u32 v{t0}, s31, v{t0}"); e(f"v_mul_u32_u24 v{t0}, 1152, v{t0}"); e(f"v_lshl_add_u32 v{t0}, v{vG}, 4, v{t0}")
    for js in range(6):
        e(f"buffer_load_dwordx4 {vr(AX(js),4)}, v{t2}, {srdQS}, 0 offen offset:{js*64}")
        e(f"buffer_load_dwordx4 {vr(AY(js),4)}, v{t3}, {srdQS}, 0 offen offset:{js*64}")
        e(f"buffer_load_dwordx4 {vr(BB(js),4)}, v{t0}, {srdQS}, 0 offen offset:{384 + js*64}")
    for js in range(6):
        e(f"{MF} {vr(DX,4)}, {vr(AX(js),4)}, {vr(BB(js),4)}, {'0' if js == 0 else vr(DX,4)}")
        e(f"{MF} {vr(DY,4)}, {vr(AY(js),4)}, {vr(BB(js),4)}, {'0' if js == 0 else vr(DY,4)}")
    for r in range(8): e(f"v_mul_f32 v{DX+r}, {hex(cs)}, v{DX+r}")
    for p in range(4): e(f"v_cvt_pk_bf16_f32 v{DX+p}, v{DX+2*p}, v{DX+2*p+1}")
    e(f"buffer_store_dwordx4 {vr(DX,4)}, v{vH}, {srdWS}, s30 offen")
    e("s_endpgm")
    E.label("K1_SIDE_VO"); E.restore(snap)
    e(f"s_add_u32 s30, s30, {WS_WVO}")
    e(f"s_lshl_b32 s31, s28, 5"); e(f"v_add_u32 v{t2}, s31, v{vI}")
    e(f"v_mul_u32_u24 v{t2}, 1152, v{t2}"); e(f"v_lshl_add_u32 v{t2}, v{vG}, 4, v{t2}")
    e(f"v_add_u32 v{t3}, {16*1152}, v{t2}")
    e(f"v_lshrrev_b32 v{t0}, 2, v{vI}"); e(f"v_and_b32 v{t1}, 3, v{vI}")
    e(f"s_cmp_eq_u32 s29, 2"); e(f"s_cselect_b32 s31, 2, 3"); e(f"s_cselect_b32 s32, 32, 0")
    e(f"s_lshl_b32 s33, s29, 2"); e(f"s_cselect_b32 s33, s33, s33")
    e(f"s_cmp_eq_u32 s29, 2"); e(f"s_cselect_b32 s33, 0, s33")
    e(f"s_add_u32 s32, s32, s33"); e(f"s_mul_i32 s33, s26, 48"); e(f"s_add_u32 s32, s32, s33")
    e(f"v_lshlrev_b32 v{t0}, s31, v{t0}"); e(f"v_add_u32 v{t0}, v{t0}, v{t1}"); e(f"v_add_u32 v{t0}, s32, v{t0}")
    e(f"v_lshlrev_b32 v{t0}, 1, v{t0}")
    e(f"v_mul_u32_u24 v{t1}, {8*384}, v{vG}"); e(f"v_add_u32 v{t0}, v{t0}, v{t1}")
    for js in range(6):
        e(f"buffer_load_dwordx4 {vr(AX(js),4)}, v{t2}, {srdQS}, 0 offen offset:{768 + js*64}")
        e(f"buffer_load_dwordx4 {vr(AY(js),4)}, v{t3}, {srdQS}, 0 offen offset:{768 + js*64}")
    G = lambda js, s: 80 + js * 8 + s
    for js in range(6):
        e(f"s_mov_b32 s31, {js*32*384}")
        for s in range(8):
            e(f"buffer_load_ushort v{G(js,s)}, v{t0}, {srdOS}, s31 offen offset:{s*384}")
        if js == 3: E.wait(vm=20)
    for js in range(6):
        for p in range(4):
            e(f"v_lshl_or_b32 v{BB(js)+p}, v{G(js,2*p+1)}, 16, v{G(js,2*p)}")
        e(f"{MF} {vr(DX,4)}, {vr(AX(js),4)}, {vr(BB(js),4)}, {'0' if js == 0 else vr(DX,4)}")
        e(f"{MF} {vr(DY,4)}, {vr(AY(js),4)}, {vr(BB(js),4)}, {'0' if js == 0 else vr(DY,4)}")
    for p in range(4): e(f"v_cvt_pk_bf16_f32 v{DX+p}, v{DX+2*p}, v{DX+2*p+1}")
    e(f"buffer_store_dwordx4 {vr(DX,4)}, v{vH}, {srdWS}, s30 offen")
    E.label("K1_EXIT")
    e("s_endpgm")
    E.label("K1_CODE_END")
    kd = """
.section .rodata,"a"
.p2align 6
.amdhsa_kernel k1_kernel
  .amdhsa_next_free_vgpr 512
  .amdhsa_next_free_sgpr 100
  .amdhsa_accum_offset 256
  .amdhsa_group_segment_fixed_size 0
  .amdhsa_kernarg_size 64
  .amdhsa_user_sgpr_count 2
  .amdhsa_user_sgpr_kernarg_segment_ptr 1
  .amdhsa_system_sgpr_workgroup_id_x 1
  .amdhsa_float_denorm_mode_32 3
.end_amdhsa_kernel
.text
"""
    return E, kd

if __name__ == "__main__":
    import sys
    E, kd = gen_k1()
    print(E.text())
    print("; nins", E.nins, "nops", E.nops, "waits", E.waits, "lds", LDS1, file=sys.stderr)
```

```python
from asmgen import *
from layout import *

NB, DPF = 6, 4
O = lambda dt, qt: (dt * 3 + qt) * 4
S = lambda b, qt, kt: 144 + b * 24 + qt * 8 + kt * 4
NEGM = lambda qt: 192 + 4 * qt
vKE, vKO = 204, 205
vV = [206, 207, 208, 209]
vD = [210, 211, 212]
vPW = 213
vVj = lambda j: 214 + j
RES = lambda qt: (192, 198, 230)[qt]
STT = lambda qt: 236 + 2 * qt
vPR = [226, 227, 228]
SH = 238
vL, vI, vG = 242, 243, 244
vR4, vR2, vI8 = 245, 246, 247
vT0 = 248
aQ = lambda ks, qt: (ks * 3 + qt) * 4
aL = lambda qt: 72 + 4 * qt
aONE = 84
aB = lambda n: 88 + 4 * (n % NB)
aHK = lambda ks: 112 + 4 * ks
aHV = lambda dt: 136 + 2 * dt
aW = lambda ks, nt: 160 + (ks * 3 + nt) * 4
aSEL = 232
sWS = 4
sOUT = 8
sW, sT, sQB, sWB = 12, 13, 14, 15
sCH = lambda j: 16 + j
sRETRY = 26
sG = lambda qt: 27 + qt
sST = lambda qt: 30 + qt
sWVO = 33
sTMP = 36
sDBG = 48
RING = 36864
QB = 135168
HC = 153600
LX = HC + 6144
OB = 30720

class CostList(list):
    pass
class Gap:
    def __init__(self): self.pre = []; self.mem = []; self.valu = []
    def room(self):
        return 2 - len(self.mem) - sum(getattr(f, "cost", 1) for f in self.valu)
    def emit(self):
        for f in self.pre: f()
        for f in self.mem: f()
        for f in self.valu: f()

def gen_k2(stamps=False, nq=27, X=None):
    X = X or {}
    E = Emitter("k2"); e = E.e
    MF = "v_mfma_f32_16x16x32_bf16"
    MF16 = "v_mfma_f32_16x16x16_bf16"
    nstamp = [0]
    def stamp(name, fine=None):
        if not stamps: return
        if fine is not None and X.get('fine') != fine: return
        if X.get('fine') and fine is None and name not in ('entry', 'end') and name not in X.get('keep', ()): return
        k = nstamp[0]; nstamp[0] += 1
        e(f"s_memtime s[{50+2*k}:{51+2*k}]")
        gen_k2.stamp_names.append(name)
    gen_k2.stamp_names = []
    def variant4(tag, body):
        e(f"s_cmp_eq_u32 s{sW}, 1"); e(f"s_cbranch_scc1 K2_{tag}_1")
        e(f"s_cmp_eq_u32 s{sW}, 2"); e(f"s_cbranch_scc1 K2_{tag}_2")
        e(f"s_cmp_eq_u32 s{sW}, 3"); e(f"s_cbranch_scc1 K2_{tag}_3")
        snap = E.snapshot(); states = []
        for w in range(4):
            E.restore(snap)
            if w: E.label(f"K2_{tag}_{w}")
            body(w)
            if w < 3: e(f"s_branch K2_{tag}_END")
            states.append(E.snapshot())
        E.merge(states)
        E.label(f"K2_{tag}_END")
    E.raw(".globl k2_kernel\n.p2align 8\n.type k2_kernel,@function\nk2_kernel:")
    e(f"s_cmp_ge_u32 s2, {8*nq}")
    e("s_cbranch_scc1 K2_EXIT")
    if stamps: e("s_memtime s[50:51]"); nstamp[0] = 1; gen_k2.stamp_names.append("entry"); e("s_memrealtime s[96:97]")
    e(f"s_load_dwordx2 s[{sWS}:{sWS+1}], s[0:1], 56")
    e(f"s_load_dwordx2 s[{sOUT}:{sOUT+1}], s[0:1], 40")
    t0, t1, t2, t3 = vT0, vT0 + 1, vT0 + 2, vT0 + 3
    e(f"v_lshrrev_b32 v{t0}, 6, v0")
    e(f"v_and_b32 v{vL}, 63, v0")
    e(f"v_readfirstlane_b32 s{sW}, v{t0}")
    e(f"v_lshlrev_b32 v{vD[0]}, 4, v{vL}")
    e(f"s_and_b32 s{sT}, s2, 7")
    e(f"s_lshr_b32 s{sQB}, s2, 3")
    e(f"v_add_u32 v{vD[1]}, 0x1000, v{vD[0]}")
    e(f"v_add_u32 v{vD[2]}, 0x2000, v{vD[0]}")
    e(f"s_mul_i32 s36, s{sT}, {FS}")
    e(f"s_mul_i32 s37, s{sQB}, 3")
    e(f"s_mul_i32 s{sWB}, s{sW}, {RING}")
    e(f"s_add_u32 s38, s37, s{sW}")
    e(f"s_cmp_eq_u32 s{sW}, 3")
    e(f"s_cselect_b32 s38, 80, s38")
    e(f"s_cselect_b32 s41, 18432, 0")
    e(f"s_add_u32 s41, s41, s{sWB}")
    e(f"s_lshr_b32 s39, s38, 1"); e(f"s_mul_i32 s39, s39, {CH}")
    e(f"s_and_b32 s38, s38, 1"); e(f"s_lshl_b32 s38, s38, 11")
    e(f"s_add_u32 s40, s39, s38"); e(f"s_add_u32 s40, s40, s36")
    e(f"s_mul_i32 s42, s{sW}, 18432")
    e(f"s_add_u32 s43, s42, {WS_WQK + 12288}")
    e(f"s_add_u32 s44, s42, {WS_WQK}")
    vPF = 144
    e(f"s_lshl_b32 s45, s{sQB}, 2"); e(f"s_add_u32 s45, s45, s{sW}")
    if X.get('pf', 1):
        npf = X.get('npf', 6)
        e(f"s_mul_i32 s46, s45, {npf}")
        e(f"v_min_u32 v{vPF}, {npf-1}, v{vL}"); e(f"v_add_u32 v{vPF}, s46, v{vPF}"); e(f"v_lshlrev_b32 v{vPF}, 7, v{vPF}")
    if X.get('pfc', 1):
        e("s_getpc_b64 s[88:89]")
        E.label("K2_PC")
        e("s_sub_u32 s88, s88, K2_PC-k2_kernel"); e("s_subb_u32 s89, s89, 0")
        e("s_and_b32 s89, s89, 0xffff"); e("s_mov_b32 s90, K2_CODE_END-k2_kernel"); e("s_mov_b32 s91, 0x20000")
        e(f"s_lshl_b32 s46, s45, 1")
        e(f"v_and_b32 v{vPF+1}, 1, v{vL}"); e(f"v_add_u32 v{vPF+1}, s46, v{vPF+1}"); e(f"v_lshlrev_b32 v{vPF+1}, 7, v{vPF+1}")
    stamp("pre_karg")
    E.waitfor(rd=[f"s[{sWS}:{sWS+1}]", f"s[{sOUT}:{sOUT+1}]"])
    e(f"s_and_b32 s{sWS+1}, s{sWS+1}, 0xffff"); e(f"s_mov_b32 s{sWS+2}, {WS_END}"); e(f"s_mov_b32 s{sWS+3}, 0x20000")
    srd = f"s[{sWS}:{sWS+3}]"
    for cb in range(3):
        e(f"s_add_u32 m0, s41, {24576 + cb*2048}")
        if cb == 0: e(f"s_and_b32 s{sOUT+1}, s{sOUT+1}, 0xffff")
        elif cb == 1: e(f"s_mov_b32 s{sOUT+2}, {T*XFS}")
        else: e(f"s_mov_b32 s{sOUT+3}, 0x20000")
        for h in range(2):
            e(f"buffer_load_dwordx4 v{vD[cb]}, {srd}, s40 offen offset:{h*1024} lds", wr=["L:tile"])
    if X.get('pf', 1):
        e(f"s_mov_b32 s35, {WS_WQK}")
        e(f"buffer_load_dword a255, v{vPF}, {srd}, s35 offen")
    if X.get('pfc', 1):
        e(f"buffer_load_dword a254, v{vPF+1}, s[88:91], 0 offen")
    def wqk_load(p):
        ct_, ks_ = p // 6, p % 6; q = ks_ * 3 + ct_
        so, q = (44, q) if q < 12 else (43, q - 12)
        e(f"buffer_load_dwordx4 v[{4*p}:{4*p+3}], v{vD[q>>2]}, {srd}, s{so} offen offset:{(q&3)*1024}")
    NW1 = X.get('nw1', 8)
    for p in range(NW1): wqk_load(p)
    stamp("iss1")
    S1 = []
    E1 = lambda txt: S1.append(txt)
    E1(f"v_and_b32 v{vI}, 15, v{vL}")
    E1(f"v_lshrrev_b32 v{vG}, 4, v{vL}")
    E1(f"v_and_b32 v{t0}, 6, v{vI}")
    E1(f"v_xor_b32 v{t0}, v{t0}, v{vG}")
    E1(f"v_lshlrev_b32 v{t0}, 4, v{t0}")
    E1(f"v_lshl_add_u32 v{t0}, v{vI}, 7, v{t0}")
    E1(f"v_add_u32 v{vKE}, s{sWB}, v{t0}")
    E1(f"v_xor_b32 v{vKO}, 64, v{vKE}")
    TE, TO, HE, HO, QR = 144, 145, 146, 147, 148
    HV = [149, 150, 151, 152]; QW = [153, 154, 155]; TE2, TO2 = 156, 157
    E1(f"v_add_u32 v{TE}, {24576}, v{t0}")
    E1(f"v_xor_b32 v{TO}, 64, v{TE}")
    E1(f"v_add_u32 v{TE2}, {2*RING}, v{TE}"); E1(f"v_add_u32 v{TO2}, {2*RING}, v{TO}")
    E1(f"v_add_u32 v{HE}, {HC}, v{t0}")
    E1(f"v_xor_b32 v{HO}, 64, v{HE}")
    E1(f"s_mul_i32 s45, s{sW}, {10*CH}"); E1(f"s_add_u32 s45, s45, s36")
    E1(f"s_add_u32 s35, s45, {10*CH}")
    E1(f"s_cmp_ge_u32 s{sQB}, 20"); E1(f"s_cselect_b32 s46, 20, 0")
    E1(f"s_cmp_ge_u32 s{sQB}, 10"); E1(f"s_cselect_b32 s47, 10, 0"); E1(f"s_max_u32 s46, s46, s47")
    E1(f"s_sub_u32 s46, s{sQB}, s46"); E1(f"s_mul_i32 s46, s46, {CH}")
    E1(f"s_add_u32 s{sCH(0)}, s45, s46")
    for j in range(1, 10):
        E1(f"s_add_u32 s{sCH(j)}, s{sCH(j-1)}, {CH}")
        E1(f"s_cmp_eq_u32 s{sCH(j)}, s35"); E1(f"s_cselect_b32 s{sCH(j)}, s45, s{sCH(j)}")
    E1(f"v_lshrrev_b32 v{t1}, 2, v{vI}")
    E1(f"v_lshl_add_u32 v{t1}, v{vG}, 2, v{t1}")
    E1(f"v_and_b32 v{t2}, 6, v{t1}")
    E1(f"v_lshlrev_b32 v{t2}, 4, v{t2}")
    E1(f"v_lshl_add_u32 v{t2}, v{t1}, 7, v{t2}")
    E1(f"v_and_b32 v{t3}, 3, v{vI}")
    E1(f"v_lshl_add_u32 v{t2}, v{t3}, 3, v{t2}")
    for m in range(4):
        E1(f"v_xor_b32 v{t3}, {32*m}, v{t2}")
        E1(f"v_add_u32 v{vV[m]}, s{sWB}, v{t3}")
        E1(f"v_add_u32 v{HV[m]}, {HC}, v{t3}")
    E1(f"v_add_u32 v{QR}, {QB}, v{vD[0]}")
    E1(f"s_mul_i32 s40, s{sW}, 3")
    for ct in range(3):
        E1(f"s_add_u32 s38, s40, {ct}")
        E1(f"s_lshr_b32 s39, s38, 1"); E1(f"s_mul_i32 s39, s39, 3072")
        E1(f"s_and_b32 s38, s38, 1"); E1(f"s_lshl_b32 s38, s38, 3"); E1(f"s_add_u32 s38, s38, s39"); E1(f"s_add_u32 s38, s38, {QB}")
        E1(f"v_add_u32 v{QW[ct]}, s38, v{vD[0]}")
    E1(f"v_mov_b32 v{t0}, 0x3f803f80")
    for k in range(4): E1(f"v_accvgpr_write_b32 a{aONE+k}, v{t0}")
    for k in range(12): E1(f"v_mov_b32 v{192+k}, 0")
    E1(f"s_mov_b32 s{sRETRY}, 0")
    def dma(c, cb, q):
        slot = c % 3
        def f():
            e(f"buffer_load_dwordx4 v{vD[cb]}, {srd}, s{sCH(c)} offen offset:{q*1024} lds", wr=[f"L:s{slot}c{cb}"])
        return f
    def setm0(c, cb):
        return lambda: e(f"s_add_u32 m0, s{sWB}, {(c % 3)*12288 + cb*4096}")
    def dma_chunk_now(c):
        for cb in range(3):
            setm0(c, cb)()
            for q in range(4): dma(c, cb, q)()
    BG = []
    B_ = lambda txt: BG.append(txt)
    B_(f"s_mul_i32 s36, s{sT}, {FS}"); B_(f"s_mul_i32 s37, s{sQB}, 3")
    for qt in range(3):
        B_(f"s_add_u32 s38, s37, {qt}")
        B_(f"s_lshr_b32 s39, s38, 1"); B_(f"s_mul_i32 s39, s39, {CH}")
        B_(f"s_and_b32 s38, s38, 1"); B_(f"s_lshl_b32 s38, s38, 11")
        B_(f"s_add_u32 s39, s39, s38"); B_(f"s_add_u32 s{sG(qt)}, s39, s36")
    B_(f"s_mul_i32 s36, s{sW}, 6")
    def h2off(dst, c16reg):
        B_(f"v_and_b32 v{t1}, 7, v{c16reg}")
        B_(f"v_and_b32 v{t2}, 6, v{vI}")
        B_(f"v_xor_b32 v{t1}, v{t1}, v{t2}")
        B_(f"v_lshlrev_b32 v{t1}, 4, v{t1}")
        B_(f"v_lshl_add_u32 v{t1}, v{vI}, 7, v{t1}")
        B_(f"v_lshrrev_b32 v{t2}, 3, v{c16reg}")
        B_(f"v_lshl_add_u32 v{dst}, v{t2}, 12, v{t1}")
    B_(f"v_add_u32 v{t0}, s36, v{vG}")
    h2off(vR4, t0)
    B_(f"v_lshrrev_b32 v{t0}, 1, v{vG}")
    B_(f"s_add_u32 s37, s36, 4")
    B_(f"v_add_u32 v{t0}, s37, v{t0}")
    h2off(vR2, t0)
    B_(f"v_and_b32 v{t0}, 1, v{vG}")
    B_(f"v_lshl_add_u32 v{vR2}, v{t0}, 3, v{vR2}")
    B_(f"v_lshlrev_b32 v{vI8}, 3, v{vI}")
    B_(f"s_mul_i32 s38, s{sT}, {N}"); B_(f"s_mul_i32 s39, s{sQB}, 48"); B_(f"s_add_u32 s38, s38, s39"); B_(f"s_lshl_b32 s38, s38, 3")
    for qt in range(3): B_(f"s_add_u32 s{sST(qt)}, s38, {WS_STAT + qt*128}")
    B_(f"v_lshlrev_b32 v{t0}, 3, v{vL}")
    B_(f"s_add_u32 s38, s{sWB}, 12288")
    B_(f"v_add_u32 v{vPW}, s38, v{t0}")
    B_(f"v_lshrrev_b32 v{t0}, 2, v{vI}")
    B_(f"v_cmp_eq_u32 vcc, v{t0}, v{vG}")
    B_(f"v_and_b32 v{t1}, 1, v{vI}")
    B_(f"v_mov_b32 v{t2}, 0x3f80")
    B_(f"v_lshlrev_b32 v{t1}, 4, v{t1}")
    B_(f"v_lshlrev_b32 v{t2}, v{t1}, v{t2}")
    B_(f"v_cndmask_b32 v{t2}, 0, v{t2}, vcc")
    B_(f"v_and_b32 v{t1}, 2, v{vI}")
    B_(f"v_cmp_eq_u32 vcc, 0, v{t1}")
    B_(f"v_cndmask_b32 v{t0}, 0, v{t2}, vcc")
    B_(f"v_cmp_ne_u32 vcc, 0, v{t1}")
    B_(f"v_cndmask_b32 v{t1}, 0, v{t2}, vcc")
    B_(f"v_accvgpr_write_b32 a{aSEL}, v{t0}"); B_(f"v_accvgpr_write_b32 a{aSEL+1}, v{t1}")
    B_(f"v_accvgpr_write_b32 a{aSEL+2}, v{t0}"); B_(f"v_accvgpr_write_b32 a{aSEL+3}, v{t1}")
    tA, P0, P1, OW, OR = 248, 250, 251, [252, 253, 254], 255
    B_(f"v_lshlrev_b32 v{tA}, 4, v{vI}")
    B_(f"v_add_u32 v{tA}, {LX}, v{tA}")
    B_(f"s_lshl_b32 s40, s{sW}, 2")
    B_(f"v_add_u32 v{tA+1}, s40, v{tA}")
    B_(f"v_lshlrev_b32 v{P0}, 3, v{vL}")
    for dl in range(3):
        B_(f"s_add_u32 s40, s{sW}, {3 - dl}"); B_(f"s_and_b32 s40, s40, 3"); B_(f"s_mul_i32 s40, s40, {RING}")
        B_(f"s_add_u32 s40, s40, {12288 + dl*4608}"); B_(f"v_add_u32 v{vPR[dl]}, s40, v{P0}")
    for nt in range(3):
        B_(f"s_mul_i32 s40, s{sW}, 3"); B_(f"s_add_u32 s40, s40, {nt}")
        B_(f"s_lshr_b32 s41, s40, 1"); B_(f"s_mul_i32 s41, s41, 3072"); B_(f"s_and_b32 s40, s40, 1"); B_(f"s_lshl_b32 s40, s40, 3")
        B_(f"s_add_u32 s40, s40, s41"); B_(f"s_add_u32 s40, s40, {OB}")
        B_(f"v_add_u32 v{OW[nt]}, s40, v{vD[0]}")
    B_(f"v_add_u32 v{OR}, {OB}, v{vD[0]}")
    B_("s_mov_b32 s35, 0xffff0000")
    for txt in S1: e(txt)
    dtmap = lambda w, j: (3 * w + 3 + j) % 12
    def vaddr(w):
        for j in range(12):
            dt = dtmap(w, j)
            e(f"v_add_u32 v{vVj(j)}, {(dt >> 2) * 4096}, v{vV[dt & 3]}")
    variant4("VAD", vaddr)
    e(f"s_add_u32 s{sWVO}, s42, {WS_WVO}")
    e(f"s_add_u32 s{sWVO+1}, s42, {WS_WVO + 12288}")
    stamp("setup")
    stream = [("w", p) for p in range(NW1, 18)] + [("d", 0, k >> 2, k & 3) for k in range(12)] + [("d", 1, k >> 2, k & 3) for k in range(X.get('c1pre', 6))]
    def issue(n=1):
        for _ in range(n):
            if not stream: return
            it = stream.pop(0)
            if it[0] == "w": wqk_load(it[1])
            else:
                _, cc, cb, q = it
                if q == 0: setm0(cc, cb)()
                dma(cc, cb, q)()
    issue(X.get('pre_tile', 8))
    E.waitfor(rd=["L:tile"])
    stamp("tilew", 'front')
    issue(X.get('post_tile', 0))
    e("s_barrier")
    stamp("tile")
    hfr = []
    for ks in range(6):
        for qt in range(3):
            adr = ((TO if ks & 1 else TE) if qt < 2 else (TO2 if ks & 1 else TE2))
            off = (qt * RING if qt < 2 else 0) + (ks >> 1) * 2048
            hfr.append(f"ds_read_b128 {ar(aW(ks,qt),4)}, v{adr} offset:{off}")
    for _ in range(X.get('hpre', 9)): e(hfr.pop(0))
    hreads = []
    for ks in range(6):
        hreads.append(f"ds_read_b128 {ar(aHK(ks),4)}, v{HO if ks&1 else HE} offset:{(ks>>1)*2048}")
    for dt in range(12):
        hreads.append(f"ds_read_b64_tr_b16 {ar(aHV(dt),2)}, v{HV[dt&3]} offset:{(dt>>2)*2048}")
    ACC = lambda ct, qt: 72 + (ct * 3 + qt) * 4
    packq = []
    def pack_items(ct):
        it = []
        for qt in range(3):
            a_ = ACC(ct, qt)
            it.append(f"v_cvt_pk_bf16_f32 v{a_}, v{a_}, v{a_+1}")
            it.append(f"v_cvt_pk_bf16_f32 v{a_+1}, v{a_+2}, v{a_+3}")
            it.append(f"ds_write_b64 v{QW[ct]}, {vr(a_,2)} offset:{qt*1024}")
        return it
    issue(X.get('post_reads', 2))
    for ct in range(3):
        for ks in range(6):
            for qt in range(3):
                c = "0" if ks == 0 else vr(ACC(ct, qt), 4)
                e(f"{MF} {vr(ACC(ct,qt),4)}, {vr((ct*6+ks)*4,4)}, {ar(aW(ks,qt),4)}, {c}")
                if hfr: e(hfr.pop(0))
                if qt == 0:
                    if ks >= 2 and packq: e(packq.pop(0))
                    if not hfr and ct >= 1 and hreads and ks < 3: e(hreads.pop(0))
                if qt == 1:
                    if ct >= 1 and hreads: e(hreads.pop(0))
                    if ct * 6 + ks >= X.get('gstart', 8): issue(X.get('gdma', 1))
                if qt == 2 and ks >= 2:
                    for _ in range(2):
                        if packq: e(packq.pop(0))
                if qt == 2 and (ct * 6 + ks) % 2 == 0: stamp(f"g{ct*6+ks}", 'gemm')
        packq += pack_items(ct)
    stamp("qgemm")
    for x_ in hreads: e(x_)
    for x_ in packq: e(x_)
    E.wait(lgkm=0)
    e("s_barrier")
    stamp("qx")
    for ks in range(6):
        for qt in range(3):
            e(f"ds_read_b128 {ar(aQ(ks,qt),4)}, v{QR} offset:{ks*3072 + qt*1024}")
        issue(X.get('rdma', 2))
    issue(99)
    stamp("qready")
    E.label("K2_RUN")
    run_state = (len(E.vm))
    frags = []
    for c in range(10):
        if c == 0: frags += [("K", 0, gi) for gi in range(12)]
        if c + 1 <= 9: frags += [("K", c + 1, gi) for gi in range(12)]
        frags += [("V", c, gi) for gi in range(12)]
    def read_frag(n):
        kind, c, gi = frags[n]; slot = c % 3; b = aB(n)
        if kind == "K":
            ks, kt = gi >> 1, gi & 1
            return [lambda: e(f"ds_read_b128 {ar(b,4)}, v{vKO if ks&1 else vKE} offset:{slot*12288 + (ks>>1)*4096 + kt*2048}", rd=[f"L:s{slot}c{ks>>1}"])]
        j = gi
        allc = [f"L:s{slot}c{k}" for k in range(3)]
        return [lambda hh=hh: e(f"ds_read_b64_tr_b16 {ar(b+2*hh,2)}, v{vVj(j)} offset:{slot*12288 + hh*2048}", rd=allc) for hh in range(2)]
    def exp_item(c, k):
        qt, kt, r = k >> 3, (k >> 2) & 1, k & 3
        reg = S(c & 1, qt, kt) + r
        f = lambda: e(f"v_exp_f32 v{reg}, v{reg}")
        f.cost = 2
        return f
    def cvt_item(c, qt, p):
        base = S(c & 1, qt, 0); src = base + 2 * p
        return lambda: e(f"v_cvt_pk_bf16_f32 v{base+p}, v{src}, v{src+1}")
    skip = [0]
    def put_bg(gap, n=2):
        k = 0
        while BG and k < n and not skip[0]:
            it = BG[0]
            if isinstance(it, tuple):
                if it[0] == "skip":
                    BG.pop(0); skip[0] = it[1]; return
                if gap.valu or gap.mem: return
                gap.mem.append(lambda txt=it[1]: e(txt)); BG.pop(0); return
            if it.startswith("s_"):
                if len(gap.pre) >= 2: break
                gap.pre.append(lambda txt=it: e(txt)); BG.pop(0)
                if gap.valu: break
                continue
            gap.valu.append(lambda txt=it: e(txt)); BG.pop(0); k += 1
            if BG and not isinstance(BG[0], tuple) and BG[0].startswith("s_"): break
    def fill_bg(gaps, c):
        if c > 8 or X.get('nobg'): return
        if skip[0]:
            skip[0] -= 1; return
        for g in gaps:
            r = g.room()
            if r > 0 and (not g.mem or (len(g.mem) == 1 and not g.valu and X.get('bgmem', 0))): put_bg(g, min(r, X.get('bgn', 2)))
    fn = [0]
    def put_reads(gap):
        n = fn[0] + DPF
        if n < len(frags): gap.mem += read_frag(n)
    def wait_next(gap):
        n = fn[0] + 1
        if n < len(frags):
            b = aB(n)
            gap.pre.append(lambda: E.waitfor(rd=[ar(b, 4)]))
    def phase_qk(c, plan):
        for gi in range(12):
            ks, kt = gi >> 1, gi & 1
            n = fn[0]; assert frags[n] == ("K", c, gi)
            gaps = [Gap(), Gap(), Gap()]
            put_reads(gaps[0]); wait_next(gaps[2])
            plan(gi, gaps)
            fill_bg(gaps, c)
            for qt in range(3):
                d = vr(S(c & 1, qt, kt), 4)
                cc = vr(NEGM(qt), 4) if ks == 0 else d
                e(f"{MF} {d}, {ar(aB(n),4)}, {ar(aQ(ks,qt),4)}, {cc}")
                gaps[qt].emit()
            fn[0] += 1
    def phase_pv(c, planL, plan):
        first = (c == 0)
        for qt in range(3):
            g = Gap(); planL(qt, g)
            P = vr(S(c & 1, qt, 0), 4)
            e(f"{MF} {ar(aL(qt),4)}, {ar(aONE,4)}, {P}, {'0' if first else ar(aL(qt),4)}")
            g.emit()
        for gi in range(12):
            n = fn[0]; assert frags[n] == ("V", c, gi)
            gaps = [Gap(), Gap(), Gap()]
            put_reads(gaps[0]); wait_next(gaps[2])
            plan(gi, gaps)
            fill_bg(gaps, c + 1)
            for qt in range(3):
                d = vr(O(gi, qt), 4)
                e(f"{MF} {d}, {ar(aB(n),4)}, {vr(S(c&1,qt,0),4)}, {'0' if first else d}")
                gaps[qt].emit()
            fn[0] += 1
    def put_dma(gap, c, k, prev=None):
        cb, q = k >> 2, k & 3
        if X.get('nodma'): return
        if q == 0: (prev or gap).pre.append(setm0(c, cb))
        gap.mem.append(dma(c, cb, q))
    extra = []
    for p in range(18):
        so, q = (sWVO, p) if p < 12 else (sWVO + 1, p - 12)
        extra.append(lambda p=p, so=so, q=q: e(f"buffer_load_dwordx4 {ar(160+4*p,4)}, v{vD[q>>2]}, {srd}, s{so} offen offset:{(q&3)*1024}"))
    def resl(qt, part):
        if part == 0: return lambda: e(f"buffer_load_dwordx4 {vr(RES(qt),4)}, v{vR4}, {srd}, s{sG(qt)} offen")
        if part == 1: return lambda: e(f"buffer_load_dwordx2 {vr(RES(qt)+4,2)}, v{vR2}, {srd}, s{sG(qt)} offen")
        return lambda: e(f"buffer_load_dwordx2 {vr(STT(qt),2)}, v{vI8}, {srd}, s{sST(qt)} offen")
    extra += [resl(2, 0), resl(2, 1), resl(0, 2), resl(1, 2), resl(2, 2)]
    late_res = [resl(0, 0), resl(0, 1), resl(1, 0), resl(1, 1)]
    def variant(tag, body):
        e(f"s_cmp_eq_u32 s{sW}, 3"); e(f"s_cbranch_scc1 K2_{tag}_END")
        states = [E.snapshot()]
        e(f"s_cmp_eq_u32 s{sW}, 1"); e(f"s_cbranch_scc1 K2_{tag}_1")
        e(f"s_cmp_eq_u32 s{sW}, 2"); e(f"s_cbranch_scc1 K2_{tag}_2")
        snap = E.snapshot()
        for w in range(3):
            E.restore(snap)
            if w: E.label(f"K2_{tag}_{w}")
            body(w)
            if w < 2: e(f"s_branch K2_{tag}_END")
            states.append(E.snapshot())
        E.merge(states)
        E.label(f"K2_{tag}_END")
    for n in range(DPF):
        for f in read_frag(n): f()
    def qkh(w):
        for ks in range(6):
            cc = vr(NEGM(w), 4) if ks == 0 else vr(SH, 4)
            e(f"{MF} {vr(SH,4)}, {ar(aHK(ks),4)}, {ar(aQ(ks,w),4)}, {cc}")
    E.waitfor(rd=[ar(aB(0), 4), ar(aQ(0, 2), 4)])
    def plan(gi, gaps):
        if gi == 5: gaps[2].pre.append(lambda: (E.waitfor(rd=[ar(aQ(5, 2), 4), ar(aHV(11), 2), ar(aHK(5), 4)]), e("s_barrier")))
        k1_ = X.get('c1pre', 6) + gi
        if k1_ < 12: put_dma(gaps[2], 1, k1_, gaps[1])
        if X.get('d2', 1) == 0:
            if gi >= 6:
                k = 2 * (gi - 6)
                put_dma(gaps[1], 2, k, gaps[0]); put_dma(gaps[2], 2, k + 1, gaps[1])
        else:
            if gi >= 6: put_dma(gaps[2], 2, gi - 6, gaps[1])
    phase_qk(0, plan)
    E.waitfor(rd=[ar(aQ(5, 2), 4), ar(aHV(11), 2), ar(aHK(5), 4)])
    variant("QKH", qkh)
    stamp("qk0")
    xi = [0]
    def put_extra(gap):
        if X.get('noextra'): xi[0] = len(extra); return
        if xi[0] < len(extra):
            gap.mem.append(extra[xi[0]]); xi[0] += 1
    DPOS = X.get('dpos', [("q", g, 2) for g in range(9)] + [("q", g, 1) for g in (9, 10, 11)])
    for j in range(10):
        c = j + 1
        if c <= 9:
            if j == 0:
                def plan(gi, gaps):
                    gaps[1].valu.append(exp_item(0, 2 * gi)); gaps[2].valu.append(exp_item(0, 2 * gi + 1))
                    if gi >= 1: gaps[0].valu.append(cvt_item(0, (gi - 1) >> 2, (gi - 1) & 3))
                    if X.get('d2', 1) == 1 and gi < 6: put_dma(gaps[0], 2, 6 + gi, None)
                phase_qk(c, plan)
                cvt_item(0, 2, 3)()
            else:
                def plan(gi, gaps):
                    if gi <= 8: gaps[1].valu.append(exp_item(j, 15 + gi))
                    if 1 <= gi <= 4: gaps[0].valu.append(cvt_item(j, 1, gi - 1))
                    if 5 <= gi <= 7: gaps[0].valu.append(cvt_item(j, 2, gi - 5))
                    if gi == 9: gaps[2].valu.append(cvt_item(j, 2, 3))
                    if j + 2 <= 9:
                        for k_, (ph, g_, gp) in enumerate(DPOS):
                            if ph == "q" and g_ == gi: put_dma(gaps[gp], j + 2, k_, gaps[gp - 1])
                phase_qk(c, plan)
        if c <= 8 or c == 9:
            last = (c == 9)
            def planL(qt, g):
                g.valu.append(exp_item(c, qt))
            def plan(gi, gaps):
                if not last:
                    gaps[1].valu.append(exp_item(c, 3 + gi))
                    if 1 <= j and j + 2 <= 9:
                        for k_, (ph, g_, gp) in enumerate(DPOS):
                            if ph == "p" and g_ == gi: put_dma(gaps[gp], j + 2, k_, gaps[gp - 1])
                    if 5 <= gi <= 8: gaps[2].valu.append(cvt_item(c, 0, gi - 5))
                    elif j == 0 and gi < 4:
                        f = lambda r=gi: e(f"v_exp_f32 v{SH+r}, v{SH+r}")
                        f.cost = 2; gaps[2].valu.append(f)
                    elif j == 0 and gi == 4: gaps[2].valu.append(lambda: e(f"v_cvt_pk_bf16_f32 v{SH}, v{SH}, v{SH+1}"))
                    elif j == 0 and gi == 9: gaps[2].valu.append(lambda: e(f"v_cvt_pk_bf16_f32 v{SH+1}, v{SH+2}, v{SH+3}"))
                    elif gi in X.get('xg', (1, 3, 9, 10)) and not gaps[2].mem: put_extra(gaps[2])
                else:
                    k = 3 + 2 * gi
                    if k < 24: gaps[1].valu.append(exp_item(c, k))
                    if k + 1 < 24: gaps[2].valu.append(exp_item(c, k + 1))
                    elif gi == 10: gaps[2].mem.append(late_res.pop(0))
                    if gi == 11:
                        gaps[1].mem.append(late_res.pop(0)); gaps[2].mem.append(late_res.pop(0))
                    for qt in range(3):
                        for p in range(4):
                            done = 8 * qt + 2 * p + 1
                            gdone = (done - 3) // 2 if done >= 3 else -1
                            if min(gdone + 1, 11) == gi: gaps[0].valu.append(cvt_item(c, qt, p))
            phase_pv(j, planL, plan)
        else:
            pend = []
            for dt in range(9):
                for qt in range(3):
                    a = O(dt, qt)
                    pend.append((dt, qt, a))
            items = []
            def mk(dt, qt):
                a = O(dt, qt)
                return [lambda: e(f"v_cvt_pk_bf16_f32 v{a}, v{a}, v{a+1}"),
                        lambda: e(f"v_cvt_pk_bf16_f32 v{a+1}, v{a+2}, v{a+3}"),
                        lambda: e(f"ds_write_b64 v{vPW}, {vr(a,2)} offset:{(dt*3+qt)*512}", wr=["L:part"])]
            cv = []; wq = []
            for (dt, qt, a) in pend:
                m = mk(dt, qt); cv.append((dt, m[0])); cv.append((dt, m[1])); wq.append((dt, m[2]))
            st = {"c": 0, "w": 0}
            def planL(qt, g):
                if late_res: g.mem.append(late_res.pop(0))
            def plan(gi, gaps):
                for k in range(3):
                    g = gaps[k]
                    room = 2 - len(g.mem)
                    if room > 0 and st["w"] < len(wq) and 2 * (st["w"] + 1) <= st["c"]:
                        g.mem.append(wq[st["w"]][1]); st["w"] += 1; room -= 1
                    while room > 0 and st["c"] < len(cv) and cv[st["c"]][0] <= gi - 2:
                        g.valu.append(cv[st["c"]][1]); st["c"] += 1; room -= 1
            phase_pv(9, planL, plan)
            stamp("pv9")
            while st["c"] < len(cv) or st["w"] < len(wq):
                if st["w"] < len(wq) and 2 * (st["w"] + 1) <= st["c"]:
                    wq[st["w"]][1](); st["w"] += 1
                else:
                    cv[st["c"]][1](); st["c"] += 1
        if j == 0:
            def pvh(w):
                e(f"{MF16} {ar(aL(w),4)}, {ar(aONE,2)}, {vr(SH,2)}, {ar(aL(w),4)}")
                for j_ in range(12):
                    e(f"{MF16} {vr(O(j_,w),4)}, {ar(aHV(dtmap(w, j_)),2)}, {vr(SH,2)}, {vr(O(j_,w),4)}")
            variant("PVH", pvh)
        if j in X.get('itstamps', (0, 4, 8)): stamp(f"it{j}")
    assert xi[0] == len(extra)
    assert not BG, len(BG)
    for qt in range(3):
        e(f"ds_write_b32 v{tA+1}, a{aL(qt)} offset:{qt*256}", wr=["L:lx"])
    AC = lambda nt, qt: (qt * 3 + nt) * 4
    for qt in range(3):
        for j in range(12):
            raw = RES(qt) + (j >> 1); d = AC(0, qt) + j
            e(f"v_and_b32 v{d}, s35, v{raw}" if j & 1 else f"v_lshlrev_b32 v{d}, 16, v{raw}")
    for qt in range(3):
        for j in range(0, 12, 2):
            d = AC(0, qt) + j
            e(f"v_pk_fma_f32 {vr(d,2)}, {vr(d,2)}, {vr(STT(qt),2)}, {vr(STT(qt),2)} op_sel:[0,1,0] op_sel_hi:[1,1,0]")
    E.wait(lgkm=0)
    e("s_barrier")
    stamp("bar1")
    LT = lambda qt: 168 + 4 * qt
    RL = 180
    for qt in range(3): e(f"ds_read_b128 {vr(LT(qt),4)}, v{tA} offset:{qt*256}")
    SUM = lambda tl: O(9 + tl // 3, tl % 3)
    FR = lambda tl: 36 + tl * 6
    reads = []
    for tl in range(9):
        for dl in range(3):
            reads.append(f"ds_read_b64 {vr(FR(tl)+2*dl,2)}, v{vPR[dl]} offset:{tl*512}")
    chk = []
    MK = ["s[38:39]", "s[40:41]", "s[42:43]", "s[44:45]", "s[46:47]", "vcc"]
    C_ = lambda txt: chk.append(txt)
    for qt in range(3):
        C_(f"v_add_f32 v{LT(qt)}, v{LT(qt)}, v{LT(qt)+1}")
        C_(f"v_add_f32 v{LT(qt)+2}, v{LT(qt)+2}, v{LT(qt)+3}")
        C_(f"v_add_f32 v{LT(qt)}, v{LT(qt)}, v{LT(qt)+2}")
    for qt in range(3):
        C_(f"v_cmp_le_f32 {MK[2*qt]}, s36, v{LT(qt)}")
        C_(f"v_cmp_ge_f32 {MK[2*qt+1]}, s37, v{LT(qt)}")
        C_(f"v_rcp_f32 v{RL+2*qt}, v{LT(qt)}")
    e(f"s_mov_b32 s36, 0x21800000")
    e(f"s_mov_b32 s37, 0x5f800000")
    ri = 0
    def more_reads(n):
        nonlocal ri
        for _ in range(n):
            if ri < len(reads): e(reads[ri]); ri += 1
    more_reads(12)
    packs = []
    def pack_o(tl):
        nt, qt = tl // 3, tl % 3; a_ = SUM(tl)
        return [f"v_cvt_pk_bf16_f32 v{a_}, v{a_}, v{a_+1}", f"v_cvt_pk_bf16_f32 v{a_+1}, v{a_+2}, v{a_+3}",
                f"ds_write_b64 v{OW[nt]}, {vr(a_,2)} offset:{qt*1024}"]
    ci = 0
    order = []
    for tl in range(9):
        order.append((tl, 0))
        if tl >= 3: order.append((tl - 3, 1))
    order += [(6, 1), (7, 1), (8, 1)]
    for n_, (tl, part) in enumerate(order):
        if part == 0: e(f"{MF} {vr(SUM(tl),4)}, {ar(aSEL,4)}, {vr(FR(tl),4)}, {vr(SUM(tl),4)}")
        else: e(f"{MF16} {vr(SUM(tl),4)}, {ar(aSEL,2)}, {vr(FR(tl)+4,2)}, {vr(SUM(tl),4)}")
        more_reads(2)
        if ci < len(chk) and n_ >= 2: e(chk[ci]); ci += 1
    while ci < len(chk): e(chk[ci]); ci += 1
    stamp("sum", 'epi')
    for k in range(1, 6): e(f"s_and_b64 s[38:39], s[38:39], {MK[k]}")
    e(f"s_cmp_eq_u64 s[38:39], exec")
    e(f"s_cselect_b32 s36, 1, s{sRETRY}")
    e(f"s_cmp_eq_u32 s36, 0")
    e(f"s_cbranch_scc1 K2_FALLBACK")
    for tl in range(9):
        a_ = SUM(tl); rl = RL + 2 * (tl % 3)
        e(f"v_pk_mul_f32 {vr(a_,2)}, {vr(a_,2)}, {vr(rl,2)} op_sel_hi:[1,0]")
        e(f"v_pk_mul_f32 {vr(a_+2,2)}, {vr(a_+2,2)}, {vr(rl,2)} op_sel_hi:[1,0]")
        if tl:
            for x_ in pack_o(tl - 1): e(x_)
    for x_ in pack_o(8): e(x_)
    stamp("owr", 'epi')
    e(f"s_mul_i32 s36, s{sT}, {XFS}"); e(f"s_mul_i32 s37, s{sQB}, {48*384}"); e(f"s_add_u32 s36, s36, s37")
    e(f"s_mul_i32 s37, s{sW}, 96"); e(f"s_add_u32 s36, s36, s37")
    e(f"s_add_u32 s37, s36, {16*384}"); e(f"s_add_u32 s38, s36, {32*384}")
    O4, O2 = 186, 187
    e(f"v_mul_u32_u24 v{O4}, 384, v{vI}"); e(f"v_lshl_add_u32 v{O2}, v{vG}, 3, v{O4}"); e(f"v_lshl_add_u32 v{O4}, v{vG}, 4, v{O4}")
    E.wait(lgkm=0)
    e("s_barrier")
    stamp("bar2")
    BF = lambda qt, ks: 36 + (qt * 6 + ks) * 4
    oreads = [f"ds_read_b128 {vr(BF(qt,ks),4)}, v{OR} offset:{(ks*3+qt)*1024}" for qt in range(3) for ks in range(6)]
    for _ in range(6): e(oreads.pop(0))
    fin = []
    def fin_items(qt):
        a_ = AC(0, qt); it = []
        for p in range(6): it.append(f"v_cvt_pk_bf16_f32 v{a_+p}, v{a_+2*p}, v{a_+2*p+1}")
        it.append(f"buffer_store_dwordx4 {vr(a_,4)}, v{O4}, s[{sOUT}:{sOUT+3}], s{36+qt} offen {X.get('st', '')}")
        it.append(f"buffer_store_dwordx2 {vr(a_+4,2)}, v{O2}, s[{sOUT}:{sOUT+3}], s{36+qt} offen offset:64 {X.get('st', '')}")
        return it
    for qt in range(3):
        k = 0
        for ks in range(6):
            for nt in range(3):
                d = vr(AC(nt, qt), 4)
                e(f"{MF} {d}, {ar(aW(ks,nt),4)}, {vr(BF(qt,ks),4)}, {d}")
                n = 0
                if oreads and k % 3 == 0: e(oreads.pop(0)); n += 1
                while n < 2 and fin and k >= 3: e(fin.pop(0)); n += 1
                k += 1
        fin += fin_items(qt)
        stamp(f"op{qt}", 'epi')
    stamp("oproj")
    for x_ in fin: e(x_)
    if stamps:
        stamp("end")
        e("s_memrealtime s[98:99]")
        E.wait(lgkm=0)
        e(f"s_lshl_b32 s36, s2, 2"); e(f"s_add_u32 s36, s36, s{sW}"); e(f"s_lshl_b32 s36, s36, 7")
        e(f"s_add_u32 s36, s36, {WS_END}")
        e(f"s_load_dwordx2 s[92:93], s[0:1], 56"); E.wait(lgkm=0)
        e(f"s_and_b32 s93, s93, 0xffff"); e(f"s_mov_b32 s94, 0x1000000"); e(f"s_mov_b32 s95, 0x20000")
        e(f"v_mov_b32 v1, s36")
        for k in range(1, nstamp[0]):
            e(f"s_sub_u32 s36, s{50+2*k}, s50"); e(f"v_mov_b32 v0, s36")
            e(f"buffer_store_dword v0, v1, s[92:95], 0 offen offset:{4*k}")
        e(f"v_mov_b32 v0, s98")
        e(f"buffer_store_dword v0, v1, s[92:95], 0 offen offset:124")
        e(f"v_mov_b32 v0, s96")
        e(f"buffer_store_dword v0, v1, s[92:95], 0 offen offset:120")
    E.label("K2_EXIT")
    e("s_endpgm")
    E.label("K2_FALLBACK")
    E.vm = []; E.lg = []; E.settle()
    e("s_waitcnt vmcnt(0) lgkmcnt(0)")
    e("s_nop 7"); e("s_nop 7")
    MX = [144, 145, 146]; TS = 148
    for qt in range(3):
        for ks in range(6):
            e(f"{MF} {vr(TS+4*qt,4)}, {ar(aHK(ks),4)}, {ar(aQ(ks,qt),4)}, {'0' if ks == 0 else vr(TS+4*qt,4)}")
    for qt in range(3):
        a = TS + 4 * qt
        e(f"v_max3_f32 v{MX[qt]}, v{a}, v{a+1}, v{a+2}")
        e(f"v_max_f32 v{MX[qt]}, v{MX[qt]}, v{a+3}")
    e(f"s_mov_b32 s40, 0")
    e(f"s_mul_i32 s41, s{sW}, {10*CH}"); e(f"s_mul_i32 s42, s{sT}, {FS}"); e(f"s_add_u32 s41, s41, s42")
    E.wait_all(); e("s_nop 7")
    E.label("K2_FB_LOOP"); E.settle()
    for cb in range(3):
        e(f"s_add_u32 m0, s{sWB}, {cb*4096}")
        for q in range(4):
            e(f"buffer_load_dwordx4 v{vD[cb]}, {srd}, s41 offen offset:{q*1024} lds", wr=["L:fb"])
    for kt in range(2):
        for ks in range(6):
            e(f"ds_read_b128 {ar(88+4*ks,4)}, v{vKO if ks&1 else vKE} offset:{(ks>>1)*4096 + kt*2048}", rd=["L:fb"])
        for qt in range(3):
            for ks in range(6):
                e(f"{MF} {vr(TS+4*qt,4)}, {ar(88+4*ks,4)}, {ar(aQ(ks,qt),4)}, {'0' if ks == 0 else vr(TS+4*qt,4)}")
        for qt in range(3):
            a = TS + 4 * qt
            e(f"v_max3_f32 v{MX[qt]}, v{MX[qt]}, v{a}, v{a+1}")
            e(f"v_max3_f32 v{MX[qt]}, v{MX[qt]}, v{a+2}, v{a+3}")
    e(f"s_add_u32 s41, s41, {CH}"); e(f"s_add_u32 s40, s40, 1")
    E.wait_all(); e("s_nop 7")
    e(f"s_cmp_lt_u32 s40, 10"); e("s_cbranch_scc1 K2_FB_LOOP")
    for qt in range(3):
        m = MX[qt]; t = TS
        e(f"v_mov_b32 v{t}, v{m}"); e(f"v_permlane16_swap_b32 v{m}, v{t}"); e(f"v_max_f32 v{m}, v{m}, v{t}")
        e(f"v_mov_b32 v{t}, v{m}"); e(f"v_permlane32_swap_b32 v{m}, v{t}"); e(f"v_max_f32 v{m}, v{m}, v{t}")
    e(f"v_lshlrev_b32 v{TS}, 2, v{vI}")
    e(f"s_mul_i32 s36, s{sW}, 192"); e(f"s_add_u32 s36, s36, {LX + 1024}")
    e(f"v_add_u32 v{TS+1}, s36, v{TS}"); e(f"v_add_u32 v{TS}, {LX + 1024}, v{TS}")
    for qt in range(3): e(f"ds_write_b32 v{TS+1}, v{MX[qt]} offset:{qt*64}")
    E.wait(lgkm=0); e("s_barrier")
    for qt in range(3):
        for w in range(4): e(f"ds_read_b32 v{TS+2+qt*4+w}, v{TS} offset:{w*192+qt*64}")
    for qt in range(3):
        a = TS + 2 + qt * 4
        e(f"v_max3_f32 v{a}, v{a}, v{a+1}, v{a+2}"); e(f"v_max_f32 v{a}, v{a}, v{a+3}")
        for k in range(4): e(f"v_sub_f32 v{NEGM(qt)+k}, 0, v{a}")
    e(f"s_mov_b32 s{sRETRY}, 1")
    E.wait_all()
    e("s_barrier")
    dma_chunk_now(0)
    for k in range(X.get('c1pre', 6)):
        if (k & 3) == 0: setm0(1, k >> 2)()
        dma(1, k >> 2, k & 3)()
    e("s_nop 7")
    e("s_branch K2_RUN")
    E.label("K2_CODE_END")
    kd = """
.section .rodata,"a"
.p2align 6
.amdhsa_kernel k2_kernel
  .amdhsa_next_free_vgpr 512
  .amdhsa_next_free_sgpr 100
  .amdhsa_accum_offset 256
  .amdhsa_group_segment_fixed_size 0
  .amdhsa_kernarg_size 64
  .amdhsa_user_sgpr_count 2
  .amdhsa_user_sgpr_kernarg_segment_ptr 1
  .amdhsa_system_sgpr_workgroup_id_x 1
  .amdhsa_float_denorm_mode_32 3
.end_amdhsa_kernel
.text
"""
    return E, kd

if __name__ == "__main__":
    E, kd = gen_k2()
    print(E.text())
    import sys
    print("; nins", E.nins, "nops", E.nops, "waits", E.waits, file=sys.stderr)
```

```python
from asmgen import *
from layout import *

MF = "v_mfma_f32_16x16x32_bf16"
MF16 = "v_mfma_f32_16x16x16_bf16"
NSLOT = 9
WRING = NSLOT * 3072
HB = 4 * WRING
XB = HB + 18432
SB = XB + 18432
STX = SB + 12288
LDS1 = STX + 1536
sX, sWQ, sWO, sWS = 4, 8, 12, 16
sW, sWB, sN0, sT = 20, 21, 22, 23
sTMP = 24
sMASK = 40
sDBG = 48
vL, vI, vG = 250, 251, 252
vWq = [240, 241, 242]; vWo = [243, 244, 245]
vTR, vTOA, vTOB = 246, 247, 248
vH = 249
aH = lambda T, ks: (T * 6 + ks) * 4
aWF = lambda buf, nt: 72 + buf * 12 + nt * 4

def gen_k1(stamps=False, X=None):
    X = X or {}
    E = Emitter("k1"); e = E.e
    nstamp = [0]; gen_k1.stamp_names = []
    def stamp(name, fine=None):
        if not stamps: return
        if fine is not None and X.get('fine') != fine: return
        if X.get('fine') and fine is None and name not in ('entry', 'end') and name not in X.get('keep', ()): return
        k = nstamp[0]; nstamp[0] += 1
        e(f"s_memtime s[{50+2*k}:{51+2*k}]"); gen_k1.stamp_names.append(name)
    E.raw(".globl k1_kernel\n.p2align 8\n.type k1_kernel,@function\nk1_kernel:")
    e("s_cmp_ge_u32 s2, 256"); e("s_cbranch_scc1 K1_EXIT")
    stamp("entry")
    if stamps: e("s_memrealtime s[96:97]")
    e("s_cmp_ge_u32 s2, 216"); e("s_cbranch_scc1 K1_SIDE")
    main_snap = None
    e(f"s_load_dwordx2 s[{sX}:{sX+1}], s[0:1], 0")
    e(f"s_load_dwordx2 s[{sWQ}:{sWQ+1}], s[0:1], 8")
    e(f"s_load_dwordx2 s[{sWO}:{sWO+1}], s[0:1], 16")
    e(f"s_load_dwordx2 s[{sWS}:{sWS+1}], s[0:1], 56")
    t0, t1, t2, t3 = 230, 231, 232, 233
    e(f"v_lshrrev_b32 v{t0}, 6, v0")
    e(f"v_and_b32 v{vL}, 63, v0")
    e(f"v_readfirstlane_b32 s{sW}, v{t0}")
    e(f"v_and_b32 v{vI}, 15, v{vL}")
    e(f"v_lshrrev_b32 v{vG}, 4, v{vL}")
    e(f"v_lshlrev_b32 v{vH}, 4, v{vL}")
    if X.get('pfc', 1):
        e("s_getpc_b64 s[88:89]")
        E.label("K1_PC")
        e("s_sub_u32 s88, s88, K1_PC-k1_kernel"); e("s_subb_u32 s89, s89, 0")
        e("s_and_b32 s89, s89, 0xffff"); e("s_mov_b32 s90, K1_CODE_END-k1_kernel"); e("s_mov_b32 s91, 0x20000")
        e(f"s_lshr_b32 s38, s2, 3"); e(f"s_lshl_b32 s38, s38, 2"); e(f"s_add_u32 s38, s38, s{sW}"); e(f"s_lshl_b32 s38, s38, 1")
        e(f"v_and_b32 v{t1}, 1, v{vL}"); e(f"v_add_u32 v{t1}, s38, v{t1}"); e(f"v_lshlrev_b32 v{t1}, 7, v{t1}")
        e(f"buffer_load_dword a251, v{t1}, s[88:91], 0 offen")
    e(f"s_mul_i32 s{sN0}, s2, 6")
    e(f"s_min_u32 s{sT}, s{sW}, 2")
    e(f"s_mul_i32 s{sWB}, s{sW}, {WRING}")
    vX = 234; X0 = 180
    e(f"v_and_b32 v{t0}, 7, v{vI}")
    e(f"s_mov_b32 s24, {XFS}")
    e(f"v_mul_lo_u32 v{t0}, v{t0}, s24")
    e(f"v_lshrrev_b32 v{t1}, 3, v{vI}")
    e(f"v_mul_u32_u24 v{t1}, 384, v{t1}")
    e(f"v_lshl_add_u32 v{t1}, v{vG}, 4, v{t1}")
    e(f"v_add_u32 v{vX}, v{t0}, v{t1}")
    e(f"s_lshl_b32 s37, s{sT}, 1"); e(f"s_add_u32 s37, s37, s{sN0}"); e(f"s_mul_i32 s37, s37, 384")
    E.waitfor(rd=[f"s[{sX}:{sX+1}]"])
    stamp("karg", 'front')
    def mksrd(b_, n):
        e(f"s_and_b32 s{b_+1}, s{b_+1}, 0xffff"); e(f"s_mov_b32 s{b_+2}, {n}"); e(f"s_mov_b32 s{b_+3}, 0x20000")
    srdX, srdWQ, srdWO, srdWS = (f"s[{b_}:{b_+3}]" for b_ in (sX, sWQ, sWO, sWS))
    mksrd(sX, T * XFS)
    ADDR = []
    real_e = e
    e = lambda txt, **kw: ADDR.append((txt, kw))
    mksrd(sWQ, 221184); mksrd(sWO, 73728); mksrd(sWS, WS_END)
    e(f"s_mov_b32 s26, 0x2aaaaaab")
    e(f"s_mul_i32 s27, s{sW}, 96")
    for k in range(3):
        e(f"v_add_u32 v{t0}, {64*k}, v{vL}")
        e(f"v_mul_hi_u32 v{t1}, v{t0}, s26")
        e(f"v_mul_u32_u24 v{t2}, 6, v{t1}")
        e(f"v_sub_u32 v{t2}, v{t0}, v{t2}")
        e(f"v_lshlrev_b32 v{t2}, 4, v{t2}")
        e(f"v_add_u32 v{t2}, s27, v{t2}")
        if k: e(f"v_subrev_u32 v{t2}, {1024*k}, v{t2}")
        e(f"v_mul_u32_u24 v{t3}, 384, v{t1}")
        e(f"v_add_u32 v{vWo[k]}, v{t3}, v{t2}")
        e(f"v_and_b32 v{t0}, 0x13, v{t1}")
        e(f"v_and_b32 v{t3}, 4, v{t1}")
        e(f"v_lshl_or_b32 v{t0}, v{t3}, 1, v{t0}")
        e(f"v_and_b32 v{t3}, 8, v{t1}")
        e(f"v_lshrrev_b32 v{t3}, 1, v{t3}")
        e(f"v_or_b32 v{t0}, v{t0}, v{t3}")
        e(f"v_mul_u32_u24 v{t0}, 1152, v{t0}")
        e(f"v_add_u32 v{vWq[k]}, v{t0}, v{t2}")
    nwaddr = len(ADDR)
    def slab_items(s):
        M, ks = s // 6, s % 6; slot = s % NSLOT
        so = 28 if s & 1 else 35
        def setup_a(): e(f"s_mov_b32 s{so}, {ks*32*1152 + M*384 if M < 3 else ks*32*384}")
        def setup(): e(f"s_add_u32 m0, s{sWB}, {slot*3072}")
        def d(k):
            if M < 3: return lambda: e(f"buffer_load_dwordx4 v{vWq[k]}, {srdWQ}, s{so} offen offset:{k*1024} lds", wr=[f"L:r{slot}"])
            return lambda: e(f"buffer_load_dwordx4 v{vWo[k]}, {srdWO}, s{so} offen offset:{k*1024} lds", wr=[f"L:r{slot}"])
        return [setup, setup_a, d(0), d(1), d(2)]
    def slab_dma(s):
        for f in slab_items(s): f()
    e(f"v_lshrrev_b32 v{t0}, 1, v{vG}"); e(f"v_lshlrev_b32 v{t0}, 4, v{t0}")
    e(f"v_and_b32 v{t1}, 1, v{vG}"); e(f"v_lshl_add_u32 v{t0}, v{t1}, 2, v{t0}")
    e(f"v_lshrrev_b32 v{t1}, 2, v{vI}"); e(f"v_add_u32 v{t0}, v{t0}, v{t1}")
    e(f"v_mul_u32_u24 v{t0}, 96, v{t0}")
    e(f"v_and_b32 v{t2}, 3, v{vI}")
    e(f"v_lshl_add_u32 v{t0}, v{t2}, 3, v{t0}")
    e(f"v_add_u32 v{vTR}, s{sWB}, v{t0}")
    e(f"v_lshl_add_u32 v{t0}, v{vG}, 2, v{t1}")
    e(f"v_mul_u32_u24 v{t0}, 96, v{t0}")
    e(f"v_add_u32 v{t0}, s{sWB}, v{t0}")
    e(f"v_lshl_add_u32 v{vTOA}, v{t2}, 4, v{t0}")
    e(f"v_lshl_add_u32 v{vTOB}, v{t2}, 3, v{t0}")
    e(f"v_add_u32 v{vTOB}, 64, v{vTOB}")
    e(f"v_lshrrev_b32 v{t0}, 1, v{vG}"); e(f"v_lshrrev_b32 v{t1}, 3, v{vI}")
    e(f"v_cmp_eq_u32 s[{sMASK}:{sMASK+1}], v{t0}, v{t1}")
    vXR4, vXR2 = 228, 229
    c4, c2 = 226, 227
    e(f"s_mul_i32 s24, s{sW}, 6")
    e(f"v_add_u32 v{c4}, s24, v{vG}")
    def xaddr(dst, c16):
        e(f"v_lshrrev_b32 v{t2}, 2, v{c16}"); e(f"v_lshlrev_b32 v{t2}, 10, v{t2}")
        e(f"v_and_b32 v{t3}, 3, v{c16}"); e(f"v_lshl_add_u32 v{t3}, v{t3}, 4, v{vI}")
        e(f"v_lshl_add_u32 v{dst}, v{t3}, 4, v{t2}"); e(f"v_add_u32 v{dst}, {HB if X.get('hres', 0) else XB}, v{dst}")
    xaddr(vXR4, c4)
    e(f"v_lshrrev_b32 v{t1}, 1, v{vG}"); e(f"s_add_u32 s24, s24, 4"); e(f"v_add_u32 v{c2}, s24, v{t1}")
    xaddr(vXR2, c2)
    e(f"v_and_b32 v{t2}, 1, v{vG}"); e(f"v_lshl_add_u32 v{vXR2}, v{t2}, 3, v{vXR2}")
    RS = 400
    LATE = []
    real2 = e
    e = lambda txt, **kw: LATE.append(txt)
    vA4, vA2, vAS, vOL, vOG = 212, 213, 214, 215, 216
    u0, u1, u2, u3, u4 = 144, 145, 146, 147, 148
    e(f"v_mul_u32_u24 v{u0}, {RS}, v{vI}"); e(f"v_add_u32 v{u0}, s33, v{u0}")
    e(f"v_lshl_add_u32 v{vA4}, v{c4}, 4, v{u0}"); e(f"v_lshl_add_u32 v{vA2}, v{c2}, 4, v{u0}")
    e(f"v_and_b32 v{u1}, 1, v{vG}"); e(f"v_lshl_add_u32 v{vA2}, v{u1}, 3, v{vA2}")
    e(f"v_lshrrev_b32 v{u0}, 3, v{vL}"); e(f"v_and_b32 v{u1}, 7, v{vL}")
    e(f"v_min_u32 v{u2}, 5, v{u0}")
    e(f"v_mul_u32_u24 v{u3}, {8*RS}, v{u2}"); e(f"v_lshl_add_u32 v{u3}, v{u1}, 4, v{u3}"); e(f"v_add_u32 v{vOL}, s34, v{u3}")
    e(f"v_add_u32 v{u2}, s{sN0}, v{u2}")
    e(f"v_lshrrev_b32 v{u3}, 5, v{u2}"); e(f"v_mul_u32_u24 v{u3}, {CH}, v{u3}")
    e(f"v_and_b32 v{u4}, 31, v{u2}"); e(f"v_lshl_add_u32 v{u3}, v{u4}, 7, v{u3}")
    e(f"v_and_b32 v{u4}, 6, v{u2}"); e(f"v_xor_b32 v{u4}, v{u4}, v{u1}"); e(f"v_lshl_add_u32 v{vOG}, v{u4}, 4, v{u3}")
    e(f"v_lshlrev_b32 v{vAS}, 3, v{u2}")
    e(f"v_mov_b32 v{u2}, 0x7ffffff0")
    e(f"v_cmp_lt_u32 vcc, 5, v{u0}"); e(f"v_cndmask_b32 v{vOG}, v{vOG}, v{u2}, vcc"); e(f"v_cndmask_b32 v{vAS}, v{vAS}, v{u2}, vcc")
    e(f"v_cmp_ne_u32 vcc, 0, v{u1}"); e(f"v_cndmask_b32 v{vAS}, v{vAS}, v{u2}, vcc")
    e = real2
    e(f"s_mov_b32 s33, {XB}")
    e(f"s_mul_i32 s34, s{sW}, {2*RS}"); e(f"s_add_u32 s34, s34, {XB}")
    e(f"s_mul_i32 s42, s{sW}, {2*FS}")
    for k in range(1, 6): e(f"s_add_u32 s{42+k}, s42, {(k//3)*FS + (k%3)*4096}")
    e(f"s_mul_i32 s31, s{sW}, {2*N*8}"); e(f"s_add_u32 s31, s31, {WS_STAT}"); e(f"s_add_u32 s32, s31, {N*8}")
    vHB, vSW, vSR, vOW, vS1, vS2, vSTR = 235, 236, 237, [238, 239, 253], 221, 222, 223
    vPWr, vPRd = 210, 211
    e(f"v_add_u32 v{vHB}, {HB}, v{vH}")
    e(f"s_mul_i32 s24, s{sW}, 3072"); e(f"s_add_u32 s24, s24, {SB}")
    e(f"v_add_u32 v{vSW}, s24, v{vH}")
    e(f"s_lshl_b32 s24, s{sT}, 10"); e(f"s_add_u32 s24, s24, {SB}"); e(f"v_add_u32 v{vSR}, s24, v{vH}")
    e(f"v_lshlrev_b32 v{vPRd}, 3, v{vL}"); e(f"v_add_u32 v{vPRd}, {STX}, v{vPRd}")
    e(f"s_lshl_b32 s24, s{sT}, 9"); e(f"v_add_u32 v{vPWr}, s24, v{vPRd}")
    for nt in range(3):
        e(f"s_mul_i32 s24, s{sW}, 3"); e(f"s_add_u32 s24, s24, {nt}")
        e(f"s_lshr_b32 s25, s24, 1"); e(f"s_lshl_b32 s25, s25, 10"); e(f"s_and_b32 s24, s24, 1"); e(f"s_lshl_b32 s24, s24, 3")
        e(f"s_add_u32 s24, s24, s25"); e(f"s_add_u32 s24, s24, {HB}")
        e(f"v_add_u32 v{vOW[nt]}, s24, v{vH}")
    e(f"s_mul_i32 s24, s{sT}, 6144")
    e(f"s_add_u32 s25, s24, {HB}"); e(f"s_add_u32 s24, s24, {XB}")
    e(f"s_cmp_eq_u32 s{sW}, 3"); e(f"s_cselect_b32 s24, {SB}, s24")
    vHW, vXW = 224, 225
    vS1W, vS1R = 221, 222
    if X.get('hres', 0):
        e(f"v_lshlrev_b32 v{vS1R}, 3, v{vI}"); e(f"v_add_u32 v{vS1R}, {STX}, v{vS1R}")
        e(f"s_lshl_b32 s26, s{sT}, 7"); e(f"v_add_u32 v{vS1W}, s26, v{vS1R}")
    e(f"v_add_u32 v{vHW}, s25, v{vH}"); e(f"v_add_u32 v{vXW}, s24, v{vH}")
    import struct
    cs = struct.unpack("<I", struct.pack("<f", SCALE_LOG2E))[0]
    e(f"s_mov_b32 s29, {hex(cs)}"); e(f"s_mov_b32 s36, 0x3baaaaab")
    ONE = 76
    e(f"v_mov_b32 v{ONE}, 0x3f803f80")
    for k in range(1, 4): e(f"v_mov_b32 v{ONE+k}, v{ONE}")
    e("v_mov_b32 v80, 0"); e("v_mov_b32 v81, 0")
    e = real_e
    pend = []
    def pump(n=1):
        for _ in range(n):
            if not pend: return
            while pend[0].__name__.startswith("setup"): pend.pop(0)()
            pend.pop(0)()
    def scalar_ahead(pumping):
        if pend and pend[0].__name__.startswith("setup"): pend.pop(0)()
    e(f"s_cmp_eq_u32 s{sW}, 3"); e("s_cbranch_scc1 K1_LOADER")
    snap0 = E.snapshot()
    for ks in range(6):
        e(f"buffer_load_dwordx4 {vr(X0+4*ks,4)}, v{vX}, {srdX}, s25x offen offset:{ks*64} {X.get('xnt', '')}".replace("s25x", "s37"))
    stamp("xiss")
    for (txt, kw) in ADDR[:nwaddr]: e(txt, **kw)
    npre = X.get('npre', 2)
    nln = X.get('nln', 4)
    for s_ in range(npre): slab_dma(s_)
    stamp("iss1")
    for (txt, kw) in ADDR[nwaddr:]: e(txt, **kw)
    for s_ in range(npre, nln): pend.extend(slab_items(s_))
    stamp("addr")
    F = lambda k: 24 + k
    SU, SQ, TM = 72, 80, 82
    E.waitfor(rd=[vr(X0, 4)])
    stamp("xin")
    for ks in range(6):
        e(f"{MF} {vr(SU,4)}, {vr(ONE,4)}, {vr(X0+4*ks,4)}, {'0' if ks == 0 else vr(SU,4)}")
        for r in range(4):
            reg = X0 + 4 * ks + r
            e(f"v_dot2c_f32_bf16 v{SQ+(r&1)}, v{reg}, v{reg}")
    ln = []
    L_ = lambda txt: ln.append(txt)
    L_(f"v_add_f32 v{SQ}, v{SQ}, v{SQ+1}")
    for r in range(4): L_(f"v_lshlrev_b32 v{F(2*r)}, 16, v{X0+r}");
    L_(f"v_mov_b32 v{TM}, v{SQ}");
    for r in range(4): L_(f"v_and_b32 v{F(2*r+1)}, 0xffff0000, v{X0+r}")
    L_(f"v_permlane16_swap_b32 v{SQ}, v{TM}"); L_(f"v_add_f32 v{SQ}, v{SQ}, v{TM}")
    L_(f"v_mul_f32 v{SU}, 0x3baaaaab, v{SU}")
    L_(f"v_mov_b32 v{TM}, v{SQ}")
    L_(f"v_lshlrev_b32 v{F(8)}, 16, v{X0+4}"); L_(f"v_and_b32 v{F(9)}, 0xffff0000, v{X0+4}")
    L_(f"v_permlane32_swap_b32 v{SQ}, v{TM}"); L_(f"v_add_f32 v{SQ}, v{SQ}, v{TM}")
    L_(f"v_mul_f32 v{TM}, v{SU}, v{SU}")
    L_(f"v_fma_f32 v{SQ}, v{SQ}, s36, -v{TM}")
    L_(f"v_max_f32 v{SQ}, 0, v{SQ}"); L_(f"v_add_f32 v{SQ}, 0x3727c5ac, v{SQ}")
    if X.get('hres', 0): L_(f"v_mov_b32 v{SU+1}, v{SQ}")
    L_(f"v_rsq_f32 v{SQ}, v{SQ}")
    for r in range(5, 8):
        L_(f"v_lshlrev_b32 v{F(2*r)}, 16, v{X0+r}"); L_(f"v_and_b32 v{F(2*r+1)}, 0xffff0000, v{X0+r}")
    L_(f"v_mul_f32 v{TM}, v{SU}, v{SQ}"); L_(f"v_sub_f32 v{TM}, 0, v{TM}")
    if X.get('hres', 0):
        L_(f"v_mul_f32 v{SU+1}, v{SU+1}, v{SQ}")
        L_(f"ds_write_b64 v{vS1W}, {vr(SU,2)}")
    HP = 84
    for r in range(24):
        if r >= 8: L_(f"v_lshlrev_b32 v{F(2*r)}, 16, v{X0+r}"); L_(f"v_and_b32 v{F(2*r+1)}, 0xffff0000, v{X0+r}")
        L_(f"v_pk_fma_f32 {vr(F(2*r),2)}, {vr(F(2*r),2)}, {vr(SQ,2)}, {vr(TM,2)} op_sel_hi:[1,0,0]")
        L_(f"v_cvt_pk_bf16_f32 v{HP+r}, v{F(2*r)}, v{F(2*r+1)}")
        if (r & 3) == 3: L_(f"ds_write_b128 v{vHW}, {vr(HP+r-3,4)} offset:{(r>>2)*1024}")
    pace = X.get('pace', 12)
    xws = [] if X.get('hres', 0) else [f"ds_write_b128 v{vXW}, {vr(X0+4*ks,4)} offset:{ks*1024}" for ks in range(6)]
    xstep = X.get('xstep', 8)
    for k, txt in enumerate(ln):
        e(txt)
        if (k + 1) % xstep == 0 and xws: e(xws.pop(0))
        if (k + 1) % pace == 0: pump()
    for txt in xws: e(txt)
    while pend: pump()
    stamp("lnend", 'ln')
    E.wait(lgkm=0)
    e("s_branch K1_JOIN")
    snapA = E.snapshot()
    E.label("K1_LOADER"); E.restore(snap0)
    vQ1, vQ2 = 4, 5
    e(f"s_lshr_b32 s38, s2, 3")
    def wpf():
        if X.get('pf', 1):
            e(f"s_lshl_b32 s39, s38, 6")
            e(f"v_add_u32 v{vQ1}, s39, v{vL}"); e(f"v_lshlrev_b32 v{vQ1}, 7, v{vQ1}")
            e(f"buffer_load_dword a255, v{vQ1}, {srdWQ}, 0 offen")
            e(f"s_mul_i32 s39, s38, 22")
            e(f"v_min_u32 v{vQ2}, 21, v{vL}"); e(f"v_add_u32 v{vQ2}, s39, v{vQ2}"); e(f"v_lshlrev_b32 v{vQ2}, 7, v{vQ2}")
            e(f"buffer_load_dword a254, v{vQ2}, {srdWO}, 0 offen")
    if X.get('pffirst', 0): wpf()
    if X.get('fine') == 'pf':
        stamp("pf_iss", 'pf'); E.wait(vm=3); stamp("pf_c", 'pf'); E.wait(vm=2); stamp("pf_1", 'pf'); E.wait(vm=0); stamp("pf_all", 'pf'); E.wait(lgkm=0)
    for (txt, kw) in ADDR[:nwaddr]: e(txt, **kw)
    for s_ in range(2): slab_dma(s_)
    if not X.get('pffirst', 0): wpf()
    slab_dma(2)
    for (txt, kw) in ADDR[nwaddr:]: e(txt, **kw)
    stamp("l_addr", 'ln')
    for s_ in range(3, nln): slab_dma(s_)
    stamp("l_done", 'ln')
    if E.lg: E.wait(lgkm=0)
    snapB = E.snapshot()
    def dmaonly(sn):
        vm = [x for x in sn[0] if any(r.startswith("L:r") for r in x[0])]
        return (vm,) + tuple(sn[1:])
    snapA, snapB = dmaonly(snapA), dmaonly(snapB)
    n_ = min(len(snapA[0]), len(snapB[0]))
    snapA = (snapA[0][-n_:],) + snapA[1:]; snapB = (snapB[0][-n_:],) + snapB[1:]
    E.merge([snapA, snapB])
    E.label("K1_JOIN")
    e("s_barrier")
    stamp("ln1")
    nxt_slab = [nln]
    def queue_upto(n):
        while nxt_slab[0] <= min(n, 23):
            pend.extend(slab_items(nxt_slab[0])); nxt_slab[0] += 1
    def slab_reads(s, buf):
        M = s // 6; slot = s % NSLOT; out = []
        for nt in range(3):
            for hh in range(2):
                if M < 3: adr, off = vTR, slot*3072 + hh*768 + nt*32
                elif nt < 2: adr, off = vTOA, slot*3072 + hh*1536 + nt*8
                else: adr, off = vTOB, slot*3072 + hh*1536
                out.append(lambda adr=adr, off=off, nt=nt, hh=hh: e(f"ds_read_b64_tr_b16 {ar(aWF(buf,nt)+2*hh,2)}, v{adr} offset:{off}", rd=[f"L:r{slot}"]))
        return out
    QA = lambda nt, Tt: (nt * 3 + Tt) * 4
    KA = lambda nt, Tt: 36 + (nt * 3 + Tt) * 4
    VA = lambda Tt, nt: 72 + (Tt * 3 + nt) * 4
    YA = lambda nt, Tt: 108 + (Tt * 3 + nt) * 4
    hread = lambda Tt, ks: (lambda: e(f"ds_read_b128 {ar(aH(Tt,ks),4)}, v{vHB} offset:{(Tt*6+ks)*1024}"))
    def gemm(M, valu=None, mem=None, cinit=False, stream_b=False, hook=None, flush=True):
        valu = valu if (hook and valu is not None) else list(valu or []); mem = list(mem or [])
        for ks in range(6):
            s = M * 6 + ks; buf = s & 1
            nxt = slab_reads(s + 1, (s + 1) & 1) if s + 1 < 24 else []
            la = X.get('la', 5) if s < X.get('la2s', 12) else X.get('la2', 4)
            queue_upto(min(s + la, s + NSLOT - 1 if s >= 1 else NSLOT - 1))
            hb = [hread(Tt, ks + 1) for Tt in range(3)] if (stream_b and ks < 5) else []
            if M < 2: stamp(f"s{s}", 'slab')
            if M >= 2: stamp(f"s{s}", 'slab2')
            k = 0
            for nt in range(3):
                for Tt in range(3):
                    W = ar(aWF(buf, nt), 4)
                    if M == 0: d, a, b = vr(QA(nt, Tt), 4), W, ar(aH(Tt, ks), 4)
                    elif M == 1: d, a, b = vr(KA(nt, Tt), 4), W, ar(aH(Tt, ks), 4)
                    elif M == 2: d, a, b = vr(VA(Tt, nt), 4), ar(aH(Tt, ks), 4), W
                    else: d, a, b = vr(YA(nt, Tt), 4), W, ar(aH(Tt, ks), 4)
                    e(f"{MF} {d}, {a}, {b}, {'0' if (ks == 0 and not cinit) else d}")
                    if k == 2: E.waitfor(rd=[ar(aWF(buf, 1), 4)])
                    if k == 5: E.waitfor(rd=[ar(aWF(buf, 2), 4)])
                    if k == 8 and nxt:
                        rr = [ar(aWF((s + 1) & 1, 0), 4)]
                        if hb: rr += [ar(aH(0, ks + 1), 4), ar(aH(1, ks + 1), 4)]
                        E.waitfor(rd=rr)
                    room = 2
                    pumping = bool(pend) and (k in X.get('pk', (2, 5, 8)) or (len(pend) > 5 and k in (3, 6)))
                    scalar_ahead(pumping)
                    if hook: room -= hook(ks, k, valu)
                    if k < 6 and nxt: nxt[k](); room -= 1
                    if k in (0, 2, 4) and hb: hb[k // 2](); room -= 1
                    if pend and pumping: pump(); room -= 1
                    if room > 0 and mem and k >= 6: mem.pop(0)(); room -= 1
                    while room > 0 and valu:
                        f = valu[0]; c = getattr(f, "cost", 1)
                        if c > room and room < 2: break
                        valu.pop(0)(); room -= c
                    k += 1
        for f in mem: f()
        if flush:
            for f in valu: f()
    V_ = lambda lst, txt, cost=1: lst.append(_mk(txt, cost))
    def _mk(txt, cost):
        f = lambda: e(txt)
        f.cost = cost; f.txt = txt
        return f
    for f in slab_reads(0, 0)[:2]: f()
    for Tt in range(3): hread(Tt, 0)()
    for f in slab_reads(0, 0)[2:]: f()
    XR = lambda Tt: 144 + 6 * Tt
    xr = []
    for Tt in range(3):
        xr.append(lambda Tt=Tt: e(f"ds_read_b128 {vr(XR(Tt),4)}, v{vXR4} offset:{Tt*6144}"))
        xr.append(lambda Tt=Tt: e(f"ds_read_b64 {vr(XR(Tt)+4,2)}, v{vXR2} offset:{Tt*6144}"))
    S1 = lambda Tt: 162 + 2 * Tt
    if X.get('hres', 0):
        for Tt in range(3): xr.append(lambda Tt=Tt: e(f"ds_read_b64 {vr(S1(Tt),2)}, v{vS1R} offset:{Tt*128}"))
    fillq = []; fillq2 = []
    for Tt in range(3):
        for j in range(12):
            raw = XR(Tt) + (j >> 1); d = YA(0, Tt) + j
            if j & 1: V_(fillq, f"v_and_b32 v{d}, 0xffff0000, v{raw}")
            else: V_(fillq, f"v_lshlrev_b32 v{d}, 16, v{raw}")
        if X.get('hres', 0):
            for j in range(12):
                d = YA(0, Tt) + j
                V_(fillq2, f"v_fma_f32 v{d}, v{d}, v{S1(Tt)+1}, v{S1(Tt)}")
    def qhook(ks, k, valu):
        if ks <= 2 and k >= 6 and xr: xr.pop(0)(); return 1
        return 0
    held = list(fillq); live = []
    def qhook2(ks, k, valu):
        r = qhook(ks, k, valu)
        if ks == 3 and k == 0: valu.extend(held); del held[:]
        return r
    gemm(0, valu=live, stream_b=True, hook=qhook2, flush=False)
    stamp("q")
    fill = []
    for Tt in range(3):
        for nt in range(3):
            a = QA(nt, Tt)
            V_(fill, f"v_cvt_pk_bf16_f32 v{a}, v{a}, v{a+1}"); V_(fill, f"v_cvt_pk_bf16_f32 v{a+1}, v{a+2}, v{a+3}")
    fill += list(live) + list(held) + list(fillq2)
    gemm(1, valu=fill, hook=lambda ks, k, valu: 0, flush=False); stamp("k")
    res_rest = fill
    assert all(f.txt.startswith("v_fma_f32") for f in res_rest), [f.txt for f in res_rest]
    SP = lambda Tt: 144 + 4 * Tt
    queue_upto(11 + X.get('las', 0))
    for nt in range(3):
        for Tt in range(3):
            a = KA(nt, Tt)
            e(f"v_cvt_pk_bf16_f32 v{a}, v{a}, v{a+1}"); e(f"v_cvt_pk_bf16_f32 v{a+1}, v{a+2}, v{a+3}")
            pump()
        for Tt in range(3):
            e(f"{MF16} {vr(SP(Tt),4)}, {vr(KA(nt,Tt),2)}, {vr(QA(nt,Tt),2)}, {'0' if nt == 0 else vr(SP(Tt),4)}")
    for Tt in range(3): e(f"ds_write_b128 v{vSW}, {vr(SP(Tt),4)} offset:{Tt*1024}")
    for f in res_rest: f()
    E.wait(lgkm=0)
    e("s_barrier")
    stamp("spart")
    SR = lambda src: 172 + 4 * src
    for src in range(4): e(f"ds_read_b128 {vr(SR(src),4)}, v{vSR} offset:{src*3072}")
    fill = []
    s0 = SR(0); m = 188; tm = 189; PPW = 190
    for r in range(4):
        V_(fill, f"v_add_f32 v{s0+r}, v{s0+r}, v{SR(1)+r}")
        V_(fill, f"v_add_f32 v{SR(2)+r}, v{SR(2)+r}, v{SR(3)+r}")
    for r in range(4): V_(fill, f"v_add_f32 v{s0+r}, v{s0+r}, v{SR(2)+r}")
    V_(fill, f"v_max3_f32 v{m}, v{s0}, v{s0+1}, v{s0+2}"); V_(fill, f"v_max_f32 v{m}, v{m}, v{s0+3}")
    V_(fill, f"v_mov_b32 v{tm}, v{m}"); V_(fill, f"v_permlane16_swap_b32 v{m}, v{tm}", 2); V_(fill, f"v_max_f32 v{m}, v{m}, v{tm}")
    V_(fill, f"v_mul_f32 v{m}, s29, v{m}")
    for r in range(4): V_(fill, f"v_fma_f32 v{s0+r}, v{s0+r}, s29, -v{m}")
    for r in range(4): V_(fill, f"v_exp_f32 v{s0+r}, v{s0+r}", 2)
    V_(fill, f"v_add_f32 v{m}, v{s0}, v{s0+1}"); V_(fill, f"v_add_f32 v{tm}, v{s0+2}, v{s0+3}"); V_(fill, f"v_add_f32 v{m}, v{m}, v{tm}")
    V_(fill, f"v_mov_b32 v{tm}, v{m}"); V_(fill, f"v_permlane16_swap_b32 v{m}, v{tm}", 2); V_(fill, f"v_add_f32 v{m}, v{m}, v{tm}")
    V_(fill, f"v_rcp_f32 v{m}, v{m}", 2)
    for r in range(4): V_(fill, f"v_mul_f32 v{s0+r}, v{s0+r}, v{m}")
    V_(fill, f"v_cvt_pk_bf16_f32 v{PPW}, v{s0}, v{s0+1}"); V_(fill, f"v_cvt_pk_bf16_f32 v{PPW+1}, v{s0+2}, v{s0+3}")
    V_(fill, f"v_cndmask_b32 v{PPW}, 0, v{PPW}, s[{sMASK}:{sMASK+1}]"); V_(fill, f"v_cndmask_b32 v{PPW+1}, 0, v{PPW+1}, s[{sMASK}:{sMASK+1}]")
    V_(fill, f"ds_write_b64 v{vPWr}, {vr(PPW,2)}")
    fill = [f for f in fill if True]
    PP = lambda Tt: 204 + 2 * Tt
    def vhook(ks, k, valu):
        if ks == 5 and k == 0:
            for f in list(valu): valu.pop(0)()
            E.wait(lgkm=0); e("s_barrier")
            return 0
        if ks == 5 and k in (6, 7, 8):
            e(f"ds_read_b64 {vr(PP(k-6),2)}, v{vPRd} offset:{(k-6)*512}")
            return 1
        return 0
    gemm(2, valu=fill, hook=vhook)
    stamp("v")
    OA = lambda Tt, nt: (Tt * 3 + nt) * 4
    order = [(Tt, nt) for nt in range(3) for Tt in range(3)]
    vpack = []
    for (Tt, nt) in order:
        a = VA(Tt, nt)
        vpack.append([f"v_cvt_pk_bf16_f32 v{a}, v{a}, v{a+1}", f"v_cvt_pk_bf16_f32 v{a+1}, v{a+2}, v{a+3}"])
    opack = []
    for (Tt, nt) in order:
        a = OA(Tt, nt)
        opack.append([f"v_cvt_pk_bf16_f32 v{a}, v{a}, v{a+1}", f"v_cvt_pk_bf16_f32 v{a+1}, v{a+2}, v{a+3}",
                      f"ds_write_b64 v{vOW[nt]}, {vr(a,2)} offset:{Tt*6144}"])
    for j in range(2):
        for x_ in vpack[j]: e(x_)
    for j, (Tt, nt) in enumerate(order):
        e(f"{MF16} {vr(OA(Tt,nt),4)}, {vr(VA(Tt,nt),2)}, {vr(PP(Tt),2)}, 0")
        if j + 2 < 9:
            for x_ in vpack[j + 2]: e(x_)
        elif j >= 7:
            for x_ in opack[j - 7][:2]: e(x_)
    for j in range(9):
        it = opack[j][2:] if j < 2 else opack[j]
        for x_ in it: e(x_)
    E.wait(lgkm=0)
    e("s_barrier")
    stamp("o")
    for Tt in range(3): hread(Tt, 0)()
    gemm(3, valu=[_mk(t_, 1) for t_ in LATE], cinit=True, stream_b=True); stamp("y")
    for Tt in range(3):
        y = YA(0, Tt)
        for p in range(6): e(f"v_cvt_pk_bf16_f32 v{y+p}, v{y+2*p}, v{y+2*p+1}")
        e(f"ds_write_b128 v{vA4}, {vr(y,4)} offset:{Tt*16*RS}")
        e(f"ds_write_b64 v{vA2}, {vr(y+4,2)} offset:{Tt*16*RS}")
    e("v_mov_b32 v60, 0x3f803f80")
    for k in range(4): e(f"v_mov_b32 v{48+k}, 0"); e(f"v_mov_b32 v{24+k}, 0")
    E.wait(lgkm=0)
    e("s_barrier")
    stamp("stat")
    RW = lambda hf, cb: 12 * hf + 4 * cb
    for hf in range(2):
        for cb in range(3): e(f"ds_read_b128 {vr(RW(hf,cb),4)}, v{vOL} offset:{hf*RS + cb*128}")
    SM = lambda hf: 48 + hf; SQ2 = lambda hf: 50 + hf
    E.waitfor(rd=["v[0:3]"]); stamp("t_rd", 'tail')
    for r in range(0, 12, 2):
        for hf in range(2):
            e(f"v_dot2c_f32_bf16 v{SM(hf)}, v{12*hf+r}, v60"); e(f"v_dot2c_f32_bf16 v{SQ2(hf)}, v{12*hf+r}, v{12*hf+r}")
        for hf in range(2):
            e(f"v_dot2c_f32_bf16 v{24+hf}, v{12*hf+r+1}, v60"); e(f"v_dot2c_f32_bf16 v{26+hf}, v{12*hf+r+1}, v{12*hf+r+1}")
    for k in range(4): e(f"v_add_f32 v{48+k}, v{48+k}, v{24+k}")
    stamp("t_dot", 'tail')
    FF = lambda hf, k: 64 + 24 * hf + k
    unp = []
    for hf in range(2):
        for r in range(12):
            unp.append(f"v_lshlrev_b32 v{FF(hf,2*r)}, 16, v{12*hf+r}"); unp.append(f"v_and_b32 v{FF(hf,2*r+1)}, 0xffff0000, v{12*hf+r}")
    for dpp in ("quad_perm:[1,0,3,2]", "quad_perm:[2,3,0,1]", "row_half_mirror"):
        for k in range(4): e(f"v_add_f32_dpp v{48+k}, v{48+k}, v{48+k} {dpp} row_mask:0xf bank_mask:0xf")
        for _ in range(2): e(unp.pop(0))
    MU = lambda hf: 52 + 4 * hf
    for hf in range(2): e(f"v_mul_f32 v{MU(hf)}, 0x3baaaaab, v{SM(hf)}")
    for hf in range(2): e(f"v_mul_f32 v{SM(hf)}, v{MU(hf)}, v{MU(hf)}")
    for hf in range(2): e(f"v_fma_f32 v{SQ2(hf)}, v{SQ2(hf)}, s36, -v{SM(hf)}")
    for hf in range(2): e(f"v_max_f32 v{SQ2(hf)}, 0, v{SQ2(hf)}")
    for hf in range(2): e(f"v_add_f32 v{SQ2(hf)}, 0x3727c5ac, v{SQ2(hf)}")
    for hf in range(2): e(f"v_rsq_f32 v{MU(hf)+2}, v{SQ2(hf)}")
    for _ in range(4): e(unp.pop(0))
    for hf in range(2): e(f"v_mul_f32 v{MU(hf)+1}, v{SQ2(hf)}, v{MU(hf)+2}")
    NM = lambda hf: 60 + 2 * hf
    for hf in range(2): e(f"v_mul_f32 v{NM(hf)}, v{MU(hf)}, v{MU(hf)+2}")
    for hf in range(2): e(f"v_sub_f32 v{NM(hf)}, 0, v{NM(hf)}")
    stamp("t_st", 'tail')
    while len(unp) > 24: e(unp.pop(0))
    for hf in range(2):
        stamp(f"t_n{hf}", 'tail')
        for r in range(12):
            if hf == 0 and unp:
                e(unp.pop(0)); e(unp.pop(0))
            e(f"v_pk_fma_f32 {vr(FF(hf,2*r),2)}, {vr(FF(hf,2*r),2)}, {vr(MU(hf)+2,2)}, {vr(NM(hf),2)} op_sel_hi:[1,0,0]")
            e(f"v_cvt_pk_bf16_f32 v{12*hf+r}, v{FF(hf,2*r)}, v{FF(hf,2*r+1)}")
            if (r & 3) == 3:
                e(f"buffer_store_dwordx4 {vr(12*hf+r-3,4)}, v{vOG}, {srdWS}, s{42+3*hf+(r>>2)} offen {X.get('st', '')}")
        e(f"buffer_store_dwordx2 {vr(MU(hf),2)}, v{vAS}, {srdWS}, s{31+hf} offen {X.get('st', '')}")
    def dump_stamps():
        stamp("end")
        e("s_memrealtime s[98:99]")
        E.wait(lgkm=0)
        e(f"s_lshl_b32 s36, s2, 2"); e(f"s_add_u32 s36, s36, s{sW}"); e(f"s_lshl_b32 s36, s36, 7")
        e(f"s_add_u32 s36, s36, {WS_END + 0x40000}")
        e(f"s_load_dwordx2 s[92:93], s[0:1], 56"); E.wait(lgkm=0)
        e(f"s_and_b32 s93, s93, 0xffff"); e(f"s_mov_b32 s94, 0x1000000"); e(f"s_mov_b32 s95, 0x20000")
        e(f"v_mov_b32 v1, s36")
        for k in range(1, nstamp[0]):
            e(f"s_sub_u32 s36, s{50+2*k}, s50"); e(f"v_mov_b32 v0, s36")
            e(f"buffer_store_dword v0, v1, s[92:95], 0 offen offset:{4*k}")
        e(f"v_mov_b32 v0, s98")
        e(f"buffer_store_dword v0, v1, s[92:95], 0 offen offset:124")
        e(f"v_mov_b32 v0, s96")
        e(f"buffer_store_dword v0, v1, s[92:95], 0 offen offset:120")
    if stamps: dump_stamps()
    e("s_endpgm")
    E.label("K1_SIDE"); E.vm = []; E.lg = []; E.settle()
    sQS, sOS = 8, 12
    e(f"s_load_dwordx2 s[{sQS}:{sQS+1}], s[0:1], 24")
    e(f"s_load_dwordx2 s[{sOS}:{sOS+1}], s[0:1], 32")
    e(f"s_load_dwordx2 s[{sWS}:{sWS+1}], s[0:1], 56")
    e(f"v_lshrrev_b32 v{t0}, 6, v0"); e(f"v_and_b32 v{vL}, 63, v0")
    e(f"v_readfirstlane_b32 s{sW}, v{t0}")
    e(f"v_and_b32 v{vI}, 15, v{vL}"); e(f"v_lshrrev_b32 v{vG}, 4, v{vL}")
    if X.get('pfk2', 1):
        e("s_getpc_b64 s[88:89]")
        E.label("K1_PC2")
        e("s_add_u32 s88, s88, k2_kernel-K1_PC2"); e("s_addc_u32 s89, s89, 0")
        e("s_and_b32 s89, s89, 0xffff"); e("s_mov_b32 s90, K2_CODE_END-k2_kernel"); e("s_mov_b32 s91, 0x20000")
        e(f"s_sub_u32 s24, s2, 216"); e(f"s_lshr_b32 s24, s24, 3"); e(f"s_lshl_b32 s24, s24, 2"); e(f"s_add_u32 s24, s24, s{sW}")
        e(f"s_mul_i32 s24, s24, 12")
        e(f"v_min_u32 v{t1}, 11, v{vL}"); e(f"v_add_u32 v{t1}, s24, v{t1}"); e(f"v_lshlrev_b32 v{t1}, 7, v{t1}")
        e(f"buffer_load_dword a255, v{t1}, s[88:91], 0 offen")
    e(f"s_sub_u32 s24, s2, 216"); e(f"s_and_b32 s26, s24, 7"); e(f"s_lshr_b32 s24, s24, 3"); e(f"s_lshl_b32 s24, s24, 2"); e(f"s_add_u32 s24, s24, s{sW}")
    e(f"s_cmp_ge_u32 s24, 18"); e("s_cbranch_scc1 K1_EXIT")
    e(f"s_lshr_b32 s25, s26, 2")
    e(f"s_mul_i32 s27, s24, 10923"); e(f"s_lshr_b32 s27, s27, 16")
    e(f"s_mul_i32 s28, s27, 6"); e(f"s_sub_u32 s29, s24, s28")
    e(f"s_and_b32 s28, s26, 1"); e(f"s_mul_i32 s28, s28, 3"); e(f"s_add_u32 s28, s28, s27")
    e(f"s_lshr_b32 s27, s26, 1"); e(f"s_and_b32 s27, s27, 1"); e(f"s_mul_i32 s27, s27, 6"); e(f"s_add_u32 s27, s27, s29")
    e(f"s_mul_i32 s26, s27, 21846"); e(f"s_lshr_b32 s26, s26, 16")
    e(f"s_mul_i32 s29, s26, 3"); e(f"s_sub_u32 s29, s27, s29")
    e(f"s_mul_i32 s24, s26, 18"); e(f"s_mul_i32 s27, s28, 3"); e(f"s_add_u32 s24, s24, s27"); e(f"s_add_u32 s24, s24, s29")
    E.waitfor(rd=[f"s[{sQS}:{sQS+1}]"])
    for (b, n) in ((sQS, 221184), (sOS, 73728), (sWS, WS_END)):
        e(f"s_and_b32 s{b+1}, s{b+1}, 0xffff"); e(f"s_mov_b32 s{b+2}, {n}"); e(f"s_mov_b32 s{b+3}, 0x20000")
    srdQS, srdOS = f"s[{sQS}:{sQS+3}]", f"s[{sOS}:{sOS+3}]"
    e(f"s_lshl_b32 s30, s24, 10"); e(f"v_lshlrev_b32 v{vH}, 4, v{vL}")
    e(f"s_cmp_eq_u32 s25, 1"); e("s_cbranch_scc1 K1_SIDE_VO")
    snap = E.snapshot()
    AX = lambda js: js * 4; AY = lambda js: 24 + js * 4; BB = lambda js: 48 + js * 4
    DX, DY = 72, 76
    e(f"s_add_u32 s30, s30, {WS_WQK}")
    e(f"v_lshrrev_b32 v{t0}, 2, v{vI}"); e(f"v_and_b32 v{t1}, 3, v{vI}")
    e(f"v_lshl_add_u32 v{t0}, v{t0}, 3, v{t1}")
    e(f"s_lshl_b32 s31, s28, 5"); e(f"v_add_u32 v{t2}, s31, v{t0}")
    e(f"v_mul_u32_u24 v{t2}, 1152, v{t2}"); e(f"v_lshl_add_u32 v{t2}, v{vG}, 4, v{t2}")
    e(f"v_add_u32 v{t3}, {4*1152}, v{t2}")
    e(f"s_mul_i32 s31, s26, 3"); e(f"s_add_u32 s31, s31, s29")
    e(f"s_lshr_b32 s32, s31, 1"); e(f"s_lshl_b32 s32, s32, 5"); e(f"s_and_b32 s31, s31, 1"); e(f"s_lshl_b32 s31, s31, 2"); e(f"s_add_u32 s31, s31, s32")
    e(f"v_add_u32 v{t0}, s31, v{t0}"); e(f"v_mul_u32_u24 v{t0}, 1152, v{t0}"); e(f"v_lshl_add_u32 v{t0}, v{vG}, 4, v{t0}")
    for js in range(6):
        e(f"buffer_load_dwordx4 {vr(AX(js),4)}, v{t2}, {srdQS}, 0 offen offset:{js*64}")
        e(f"buffer_load_dwordx4 {vr(AY(js),4)}, v{t3}, {srdQS}, 0 offen offset:{js*64}")
        e(f"buffer_load_dwordx4 {vr(BB(js),4)}, v{t0}, {srdQS}, 0 offen offset:{384 + js*64}")
    for js in range(6):
        e(f"{MF} {vr(DX,4)}, {vr(AX(js),4)}, {vr(BB(js),4)}, {'0' if js == 0 else vr(DX,4)}")
        e(f"{MF} {vr(DY,4)}, {vr(AY(js),4)}, {vr(BB(js),4)}, {'0' if js == 0 else vr(DY,4)}")
    for r in range(8): e(f"v_mul_f32 v{DX+r}, {hex(cs)}, v{DX+r}")
    for p in range(4): e(f"v_cvt_pk_bf16_f32 v{DX+p}, v{DX+2*p}, v{DX+2*p+1}")
    e(f"buffer_store_dwordx4 {vr(DX,4)}, v{vH}, {srdWS}, s30 offen")
    e("s_endpgm")
    E.label("K1_SIDE_VO"); E.restore(snap)
    e(f"s_add_u32 s30, s30, {WS_WVO}")
    e(f"s_lshl_b32 s31, s28, 5"); e(f"v_add_u32 v{t2}, s31, v{vI}")
    e(f"v_mul_u32_u24 v{t2}, 1152, v{t2}"); e(f"v_lshl_add_u32 v{t2}, v{vG}, 4, v{t2}")
    e(f"v_add_u32 v{t3}, {16*1152}, v{t2}")
    e(f"v_lshrrev_b32 v{t0}, 2, v{vI}"); e(f"v_and_b32 v{t1}, 3, v{vI}")
    e(f"s_cmp_eq_u32 s29, 2"); e(f"s_cselect_b32 s31, 2, 3"); e(f"s_cselect_b32 s32, 32, 0")
    e(f"s_lshl_b32 s33, s29, 2"); e(f"s_cselect_b32 s33, s33, s33")
    e(f"s_cmp_eq_u32 s29, 2"); e(f"s_cselect_b32 s33, 0, s33")
    e(f"s_add_u32 s32, s32, s33"); e(f"s_mul_i32 s33, s26, 48"); e(f"s_add_u32 s32, s32, s33")
    e(f"v_lshlrev_b32 v{t0}, s31, v{t0}"); e(f"v_add_u32 v{t0}, v{t0}, v{t1}"); e(f"v_add_u32 v{t0}, s32, v{t0}")
    e(f"v_lshlrev_b32 v{t0}, 1, v{t0}")
    e(f"v_mul_u32_u24 v{t1}, {8*384}, v{vG}"); e(f"v_add_u32 v{t0}, v{t0}, v{t1}")
    for js in range(6):
        e(f"buffer_load_dwordx4 {vr(AX(js),4)}, v{t2}, {srdQS}, 0 offen offset:{768 + js*64}")
        e(f"buffer_load_dwordx4 {vr(AY(js),4)}, v{t3}, {srdQS}, 0 offen offset:{768 + js*64}")
    G = lambda js, s: 80 + js * 8 + s
    for js in range(6):
        e(f"s_mov_b32 s31, {js*32*384}")
        for s in range(8):
            e(f"buffer_load_ushort v{G(js,s)}, v{t0}, {srdOS}, s31 offen offset:{s*384}")
        if js == 3: E.wait(vm=20)
    for js in range(6):
        for p in range(4):
            e(f"v_lshl_or_b32 v{BB(js)+p}, v{G(js,2*p+1)}, 16, v{G(js,2*p)}")
        e(f"{MF} {vr(DX,4)}, {vr(AX(js),4)}, {vr(BB(js),4)}, {'0' if js == 0 else vr(DX,4)}")
        e(f"{MF} {vr(DY,4)}, {vr(AY(js),4)}, {vr(BB(js),4)}, {'0' if js == 0 else vr(DY,4)}")
    for p in range(4): e(f"v_cvt_pk_bf16_f32 v{DX+p}, v{DX+2*p}, v{DX+2*p+1}")
    e(f"buffer_store_dwordx4 {vr(DX,4)}, v{vH}, {srdWS}, s30 offen")
    E.label("K1_EXIT")
    e("s_endpgm")
    E.label("K1_CODE_END")
    kd = """
.section .rodata,"a"
.p2align 6
.amdhsa_kernel k1_kernel
  .amdhsa_next_free_vgpr 512
  .amdhsa_next_free_sgpr 100
  .amdhsa_accum_offset 256
  .amdhsa_group_segment_fixed_size 0
  .amdhsa_kernarg_size 64
  .amdhsa_user_sgpr_count 2
  .amdhsa_user_sgpr_kernarg_segment_ptr 1
  .amdhsa_system_sgpr_workgroup_id_x 1
  .amdhsa_float_denorm_mode_32 3
.end_amdhsa_kernel
.text
"""
    return E, kd

if __name__ == "__main__":
    import sys
    E, kd = gen_k1()
    print(E.text())
    print("; nins", E.nins, "nops", E.nops, "waits", E.waits, "lds", LDS1, file=sys.stderr)
```

```python
import sys, build
def mk(name, X1=None, X2=None):
    open(f"exp/{name}.s", "w").write(build.full(stamps=False, X1=X1, X2=X2))
if __name__ == "__main__":
    for name, X1, X2 in eval(sys.argv[1]): mk(name, X1, X2)
```
